```python
import torch

def _softmax(x, axis=-1):
    return torch.softmax(x, dim=axis)
def _gelu(x):
    return torch.nn.functional.gelu(x, approximate="tanh")
def _silu(x):
    return torch.nn.functional.silu(x)
def _sigmoid(x):
    return torch.sigmoid(x)
def _layernorm(x, axis=-1, eps=1e-5):
    m = x.mean(dim=axis, keepdim=True)
    v = x.var(dim=axis, keepdim=True, unbiased=False)
    return (x - m) / torch.sqrt(v + eps)
def _scatter_add(tgt, idx, src, axis=0):
    return tgt.clone().index_add_(axis, idx, src)
def _segment_sum(src, seg, n):
    out = torch.zeros((n,) + src.shape[1:], dtype=src.dtype)
    return out.index_add_(0, seg, src)
def _pad(x, pw):
    flat = tuple(v for pair in reversed(pw) for v in pair)
    return torch.nn.functional.pad(x, flat)

kernel_name = 'standalone__gqa_block_cached__near_ridge'

def setup_inputs():

    _w = (lambda a: (lambda t: t.to(torch.bfloat16) if t.is_floating_point() else t)(torch.as_tensor(a)))
    B, Sq, D = 8, 192, 512
    Hq, Hkv, Sk, Dh = 32, 32, 1024, 128
    assert Hq % Hkv == 0, (Hq, Hkv)
    return {
        "x": _w((lambda *s: torch.randn(*s, dtype=torch.bfloat16) * 0.8)(B, Sq, D)),
        "k_cache": _w((lambda *s: torch.randn(*s, dtype=torch.bfloat16) * 0.8)(B, Hkv, Sk, Dh)),
        "v_cache": _w((lambda *s: torch.randn(*s, dtype=torch.bfloat16) * 0.05)(B, Hkv, Sk, Dh)),
        "wq": _w((lambda *s: torch.randn(*s, dtype=torch.bfloat16) * 0.8)(D, Hq * Dh) * (D ** -0.5)),
        "wo": _w((lambda *s: torch.randn(*s, dtype=torch.bfloat16) * 0.05)(Hq * Dh, D) * ((Hq * Dh) ** -0.5)),
    }

def reference(x, k_cache, v_cache, wq, wo):
    B, Sq, D = x.shape
    Hq, Dh = 32, 128
    Hkv = k_cache.shape[1]
    rep = Hq // Hkv
    q = (lambda x, *d: x.permute(*d))((x @ wq).reshape(B, Sq, Hq, Dh), 0, 2, 1, 3)
    k = (lambda x, n, axis: torch.repeat_interleave(x, n, dim=axis))(k_cache, rep, axis=1)
    v = (lambda x, n, axis: torch.repeat_interleave(x, n, dim=axis))(v_cache, rep, axis=1)
    scores = torch.einsum("bhqd,bhkd->bhqk", q, k) * (Dh ** -0.5)
    p = _softmax(scores, axis=-1)
    o = torch.einsum("bhqk,bhkd->bhqd", p, v)
    return (lambda x, *d: x.permute(*d))(o, 0, 2, 1, 3).reshape(B, Sq, Hq * Dh) @ wo
```

```python
import re

TRANS = ("v_exp_f32", "v_log_f32", "v_rcp_f32", "v_rsq_f32", "v_sqrt_f32", "v_sin_f32", "v_cos_f32")
REG_RE = re.compile(r"^(-?)(?:abs\()?([vas])(?:(\d+)|\[(\d+):(\d+)\])\)?$")


def regs_of(op):
    op = op.strip()
    if op in ("vcc", "vcc_lo", "vcc_hi"):
        return {("vcc", 0)}
    if op in ("exec", "exec_lo", "exec_hi"):
        return {("exec", 0)}
    if op == "m0":
        return {("m0", 0)}
    m = REG_RE.match(op)
    if not m:
        return set()
    k = m.group(2)
    if m.group(3) is not None:
        return {(k, int(m.group(3)))}
    return {(k, i) for i in range(int(m.group(4)), int(m.group(5)) + 1)}


class Ins:
    def __init__(self, text):
        self.text = text
        t = text.split(";")[0].strip()
        parts = t.split(None, 1)
        self.mn = parts[0]
        rest = parts[1] if len(parts) > 1 else ""
        ops = [o.strip() for o in rest.split(",")] if rest else []
        self.mods = []
        if ops:
            last = ops[-1].split()
            if last:
                ops[-1] = last[0]
                self.mods = last[1:]
        self.ops = ops
        mn = self.mn
        self.is_mfma = mn.startswith("v_mfma")
        self.is_valu = mn.startswith("v_") and not self.is_mfma
        self.is_trans = any(mn.startswith(x) for x in TRANS)
        self.is_vmem = mn.startswith("buffer_") or mn.startswith("global_")
        self.is_ds = mn.startswith("ds_")
        self.is_salu = mn.startswith("s_")
        self.is_lds_dma = self.is_vmem and ("lds" in self.mods or "load_lds" in mn)
        self.passes = 0
        self.w = set()
        self.r = set()
        self.srcA = self.srcB = self.srcC = set()
        self.store_data = set()
        R = [regs_of(o) for o in ops]
        if self.is_mfma:
            self.passes = 8 if "32x32x16" in mn else 4 if "16x16x32" in mn else None
            assert self.passes, mn
            self.w = R[0]
            self.srcA, self.srcB, self.srcC = R[1], R[2], R[3]
            self.r = R[1] | R[2] | R[3]
        elif self.is_valu:
            if mn.startswith("v_nop"):
                pass
            elif mn.startswith("v_permlane"):
                self.w = R[0] | R[1]
                self.r = R[0] | R[1]
            elif mn.startswith("v_cmp"):
                self.w = R[0]
                for x in R[1:]:
                    self.r |= x
            elif "_co_" in mn:
                self.w = R[0] | R[1]
                for x in R[2:]:
                    self.r |= x
            else:
                self.w = R[0]
                for x in R[1:]:
                    self.r |= x
                if mn.startswith("v_fmac") or mn.startswith("v_pk_fmac"):
                    self.r |= R[0]
                if mn.startswith("v_cndmask") and len(ops) == 3:
                    self.r |= {("vcc", 0)}
        elif self.is_ds:
            if mn.startswith("ds_read") or mn.startswith("ds_bpermute") or mn.startswith("ds_swizzle"):
                self.w = R[0]
                for x in R[1:]:
                    self.r |= x
            else:
                for x in R:
                    self.r |= x
        elif self.is_vmem:
            if mn in ("buffer_wbl2", "buffer_inv"):
                pass
            elif self.is_lds_dma:
                for x in R:
                    self.r |= x
                self.r |= {("m0", 0)}
            elif "_load" in mn:
                self.w = R[0]
                for x in R[1:]:
                    self.r |= x
            elif "atomic" in mn:
                for x in R:
                    self.r |= x
                if "sc0" in self.mods:
                    self.w = R[0]
            else:
                for x in R:
                    self.r |= x
                if "x4" in mn or "x3" in mn:
                    self.store_data = R[0] if mn.startswith("buffer_") else R[1]
        elif self.is_salu:
            nodst = ("s_cmp", "s_waitcnt", "s_branch", "s_cbranch", "s_barrier", "s_nop", "s_setprio",
                     "s_endpgm", "s_sleep", "s_bitcmp")
            if not any(mn.startswith(x) for x in nodst) and R:
                self.w = R[0]
                for x in R[1:]:
                    self.r |= x
            else:
                for x in R:
                    self.r |= x
        self.states = 1
        if mn == "s_nop":
            self.states = int(ops[0], 0) + 1

    def vw(self):
        return {x for x in self.w if x[0] in "va"}

    def sw(self):
        return {x for x in self.w if x[0] in ("s", "vcc")}


def need(p, c):
    n = 0
    if p.is_valu:
        vw = p.vw()
        if c.is_mfma and vw & c.r:
            n = max(n, 2)
        if c.is_valu and c.mn.startswith("v_permlane") and vw & c.r:
            n = max(n, 2)
        if c.is_valu and (c.mn.startswith("v_readfirstlane") or c.mn.startswith("v_readlane")) and vw & c.r:
            n = max(n, 1)
        if c.is_valu and any("dpp" in m or m.startswith("row_") or m.startswith("quad_perm") for m in c.mods) and vw & c.r:
            n = max(n, 2)
        if p.is_trans and c.is_valu and not c.is_trans and vw & c.r:
            n = max(n, 1)
        sw = p.sw()
        if sw:
            if c.is_valu and sw & c.r:
                n = max(n, 4 if c.mn.startswith("v_readlane") or c.mn.startswith("v_writelane") else 2)
            if c.is_vmem and sw & c.r:
                n = max(n, 5)
            if c.is_salu and sw & c.r:
                n = max(n, 1)
        if ("exec", 0) in p.w:
            n = max(n, 5)
    if p.is_mfma:
        P = p.passes
        if c.is_mfma:
            if p.w & c.srcC:
                if p.w == c.srcC and p.passes == c.passes:
                    pass
                else:
                    n = max(n, 6 if P == 4 else 10)
            if p.w & (c.srcA | c.srcB):
                n = max(n, 8 if P == 4 else 12)
        elif c.is_valu:
            if p.w & (c.r | c.w):
                n = max(n, 8 if P == 4 else 12)
            if p.srcC & c.w:
                n = max(n, 3 if P == 4 else 7)
        elif c.is_vmem or c.is_ds:
            if p.w & (c.r | c.w):
                n = max(n, 8 if P == 4 else 12)
    if p.is_salu and ("m0", 0) in p.w and c.is_lds_dma:
        n = max(n, 1)
    if p.store_data:
        if c.is_valu and p.store_data & c.w:
            n = max(n, 2)
        elif p.store_data & c.w:
            n = max(n, 1)
    return n


class Asm:
    def __init__(self):
        self.items = []

    def I(self, text):
        for ln in text.strip().split("\n"):
            ln = ln.strip()
            if not ln:
                continue
            if ln.startswith(";"):
                self.items.append(("t", "    " + ln))
            else:
                self.items.append(("i", Ins(ln)))

    def L(self, name):
        self.items.append(("l", name))

    def T(self, text):
        self.items.append(("t", text))

    def C(self, text):
        self.items.append(("t", "    ; " + text))

    def pad_hazards(self, verbose=False):
        total = 0
        start = 0
        while True:
            items = self.items
            labels = {it[1]: k for k, it in enumerate(items) if it[0] == "l"}
            jumps = {}
            for k, it in enumerate(items):
                if it[0] == "i" and (it[1].mn.startswith("s_cbranch") or it[1].mn == "s_branch"):
                    jumps.setdefault(labels[it[1].ops[0]], []).append(k)
            fix = None
            for k, it in enumerate(items):
                if it[0] != "i" or k < start:
                    continue
                c = it[1]
                if c.is_salu and not (c.r & {("vcc", 0)}) and not any(x[0] == "s" for x in c.r):
                    continue
                worst = 0
                stack = [(k - 1, 0)]
                seen = set()
                while stack:
                    j, d = stack.pop()
                    while j >= 0 and d < 13:
                        if (j, d) in seen:
                            break
                        seen.add((j, d))
                        e = items[j]
                        if e[0] == "l":
                            for src in jumps.get(j, []):
                                stack.append((src, d))
                            j -= 1
                            jj = j
                            while jj >= 0 and items[jj][0] == "t":
                                jj -= 1
                            if jj >= 0 and items[jj][0] == "i" and items[jj][1].mn in ("s_branch", "s_endpgm"):
                                break
                            continue
                        if e[0] == "t":
                            j -= 1
                            continue
                        p = e[1]
                        n = need(p, c)
                        if n > d:
                            worst = max(worst, n - d)
                        d += p.states
                        j -= 1
                if worst:
                    fix = (k, worst)
                    break
            if not fix:
                break
            k, w = fix
            start = k
            if verbose:
                print("pad %d before: %s" % (w, items[k][1].text))
            items.insert(k, ("i", Ins("s_nop %d" % (w - 1))))
            total += 1
        return total

    def text(self):
        out = []
        for it in self.items:
            if it[0] == "i":
                out.append("    " + it[1].text)
            elif it[0] == "l":
                out.append(it[1] + ":")
            else:
                out.append(it[1])
        return "\n".join(out) + "\n"


def vr(a, n=1):
    return "v%d" % a if n == 1 else "v[%d:%d]" % (a, a + n - 1)


def sr(a, n=1):
    return "s%d" % a if n == 1 else "s[%d:%d]" % (a, a + n - 1)
```

```python
import struct, sys, math
from asmlib import Asm, vr, sr

def f32(x):
    return "0x%08x" % struct.unpack("<I", struct.pack("<f", x))[0]

CSCALE = (128 ** -0.5) * math.log2(math.e)
THRESH = 8.0

XBUF = {1: 0, 0: 24576, 2: 66560}
VR = 91136
WBUF = {1: VR + 3 * 16384, 0: VR + 2 * 16384, 2: VR + 1 * 16384}
KSLOT = [49152, 66560, 31744, 7168]
VSLOT = [VR + 16384 * n for n in range(4)]
KBASE = 7168
MERGE = 24576
MLBUF = 122880

def srd(a, d, base_lo, base_hi, nrec):
    a.I(f"s_mov_b32 s{d}, s{base_lo}")
    a.I(f"s_and_b32 s{d+1}, s{base_hi}, 0xffff")
    if isinstance(nrec, int):
        a.I(f"s_mov_b32 s{d+2}, {nrec}")
    else:
        a.I(f"s_mov_b32 s{d+2}, {nrec}")
    a.I(f"s_mov_b32 s{d+3}, 0x00020000")

def gen_attn(a, opt):
    NT = " nt" if opt.get("nt") else ""
    vO, vQ, vS, vK, vV = 0, 64, 96, 112, 128
    vKA, vVA, vKD, vVD = 144, 146, 150, 151
    vNB, vTHR, vL0, vL1, vM = 152, 153, 154, 155, 164
    vP, vMX = 156, 165
    sX, sW, sK, sV, sO = 16, 20, 24, 28, 32
    sWV, sB, sH, sI, sJ = 36, 37, 38, 39, 40
    sW1088, sW1024, sOff0, sOff1, sT = 41, 42, 43, 44, 45
    sC, sTC, sRot = 50, 51, 52

    a.L("attn_kernel")
    a.I("s_cmp_ge_u32 s2, 256")
    a.I("s_cbranch_scc1 A_done")
    a.I("s_load_dwordx8 s[4:11], s[0:1], 0")
    a.I("s_load_dwordx2 s[12:13], s[0:1], 56")
    a.I("v_lshrrev_b32 v60, 6, v0")
    a.I("v_and_b32 v63, 63, v0")
    a.I(f"v_readfirstlane_b32 s{sWV}, v60")
    a.I("s_and_b32 s46, s2, 1")
    a.I("s_lshl_b32 s46, s46, 2")
    a.I("s_bfe_u32 s47, s2, 0x20003")
    a.I(f"s_add_u32 s{sB}, s46, s47")
    a.I("s_bfe_u32 s46, s2, 0x20001")
    a.I("s_lshl_b32 s46, s46, 3")
    a.I("s_lshr_b32 s47, s2, 5")
    a.I(f"s_add_u32 s{sH}, s46, s47")
    a.I(f"s_lshr_b32 s{sI}, s{sWV}, 1")
    a.I(f"s_and_b32 s{sJ}, s{sWV}, 1")
    a.I(f"s_mul_i32 s{sW1088}, s{sWV}, 1088")
    a.I(f"s_lshl_b32 s{sW1024}, s{sWV}, 10")
    a.I(f"s_mov_b32 s{sC}, {f32(CSCALE)}")
    a.I(f"s_mov_b32 s{sTC}, {f32(THRESH / CSCALE)}")
    if opt.get("rot"):
        a.I(f"s_bfe_u32 s{sRot}, s2, 0x40003")
    else:
        a.I(f"s_mov_b32 s{sRot}, 0")
    a.I("v_lshrrev_b32 v62, 4, v63")
    a.I("v_and_b32 v61, 15, v63")
    a.I("v_xor_b32 v60, v61, v62")
    a.I("v_lshlrev_b32 v60, 4, v60")
    a.I(f"v_lshl_add_u32 v{vKD}, v62, 8, v60")
    a.I("v_lshlrev_b32 v60, 2, v62")
    a.I("v_xor_b32 v60, v61, v60")
    a.I("v_lshlrev_b32 v60, 4, v60")
    a.I(f"v_lshl_add_u32 v{vVD}, v62, 8, v60")
    a.I("v_lshl_add_u32 v55, v62, 13, v60")
    a.I(f"s_lshl_b32 s46, s{sJ}, 2")
    a.I("v_add_u32 v60, s46, v62")
    a.I("v_and_b32 v59, 7, v63")
    a.I("v_xor_b32 v60, v59, v60")
    a.I("v_lshlrev_b32 v60, 4, v60")
    a.I("v_lshrrev_b32 v59, 3, v63")
    a.I("v_lshl_add_u32 v54, v59, 10, v60")
    a.I("s_waitcnt lgkmcnt(0)")
    a.I(f"s_mul_i32 s46, s{sB}, 196608")
    a.I("s_add_u32 s4, s4, s46")
    a.I("s_addc_u32 s5, s5, 0")
    srd(a, sX, 4, 5, 196608)
    a.I(f"s_lshl_b32 s46, s{sH}, 8")
    a.I("s_add_u32 s10, s10, s46")
    a.I("s_addc_u32 s11, s11, 0")
    a.I("s_sub_u32 s47, 4194304, s46")
    srd(a, sW, 10, 11, "s47")
    a.I(f"s_lshl_b32 s46, s{sB}, 5")
    a.I(f"s_add_u32 s46, s46, s{sH}")
    a.I("s_lshl_b32 s46, s46, 18")
    a.I("s_add_u32 s6, s6, s46")
    a.I("s_addc_u32 s7, s7, 0")
    srd(a, sK, 6, 7, 262144)
    a.I("s_add_u32 s8, s8, s46")
    a.I("s_addc_u32 s9, s9, 0")
    srd(a, sV, 8, 9, 262144)
    srd(a, sO, 12, 13, 12582912)

    a.I(f"s_lshl_b32 s48, s{sWV}, 13")
    a.I(f"s_lshl_b32 s49, s{sWV}, 15")

    def issue_chunk(c):
        xb, wb = XBUF[c % 3], WBUF[c % 3]
        for k in range(3):
            a.I(f"s_add_u32 m0, s{sW1024}, {xb + 8192 * k}")
            a.I(f"s_add_u32 s46, s48, {65536 * k + 128 * c}")
            a.I(f"buffer_load_dwordx4 v54, {sr(sX,4)}, s46 offen lds")
        for k in range(2):
            a.I(f"s_add_u32 m0, s{sW1024}, {wb + 8192 * k}")
            a.I(f"s_add_u32 s46, s49, {(64 * c + 32 * k) * 8192}")
            a.I(f"buffer_load_dwordx4 v55, {sr(sW,4)}, s46 offen lds")

    def issue_tile(slot, tile_sreg=None, tile_imm=None):
        if tile_sreg is not None:
            a.I(f"s_add_u32 s46, s{tile_sreg}, s{sRot}")
            if tile_imm:
                a.I(f"s_add_u32 s46, s46, {tile_imm}")
        else:
            a.I(f"s_add_u32 s46, s{sRot}, {tile_imm}")
        a.I("s_and_b32 s46, s46, 15")
        a.I("s_lshl_b32 s46, s46, 14")
        a.I(f"s_add_u32 s{sOff0}, s46, s{sW1024}")
        a.I(f"s_add_u32 s{sOff1}, s{sOff0}, 8192")
        a.I(f"s_add_u32 m0, s{sW1088}, {KSLOT[slot]}")
        a.I(f"buffer_load_dwordx4 v{vKD}, {sr(sK,4)}, s{sOff0} offen lds{NT}")
        a.I(f"s_add_u32 m0, s{sW1088}, {KSLOT[slot] + 8 * 1088}")
        a.I(f"buffer_load_dwordx4 v{vKD}, {sr(sK,4)}, s{sOff1} offen lds{NT}")
        a.I(f"s_add_u32 m0, s{sW1024}, {VSLOT[slot]}")
        a.I(f"buffer_load_dwordx4 v{vVD}, {sr(sV,4)}, s{sOff0} offen lds{NT}")
        a.I(f"s_add_u32 m0, s{sW1024}, {VSLOT[slot] + 8192}")
        a.I(f"buffer_load_dwordx4 v{vVD}, {sr(sV,4)}, s{sOff1} offen lds{NT}")

    nskip = [0]
    def loader_only(fn):
        lab = f"A_skip{nskip[0]}"
        nskip[0] += 1
        a.I(f"s_cmp_ge_u32 s{sWV}, 8")
        a.I(f"s_cbranch_scc1 {lab}")
        fn()
        a.L(lab)

    def pro():
        issue_chunk(0); issue_chunk(1); issue_chunk(2); issue_tile(0, None, 0)
    loader_only(pro)

    a.I("v_and_b32 v60, 31, v63")
    a.I("v_lshrrev_b32 v59, 5, v63")
    a.I(f"s_lshl_b32 s46, s{sI}, 12")
    a.I("v_lshl_add_u32 v58, v60, 7, s46")
    a.I("v_bfe_u32 v57, v60, 1, 3")
    a.I("v_xor_b32 v57, v57, v59")
    for s in range(4):
        a.I(f"v_xor_b32 v56, {2*s}, v57")
        a.I(f"v_lshl_add_u32 v{48+s}, v56, 4, v58")
    for s in range(4):
        a.I(f"v_add_u32 v{44+s}, {XBUF[2]}, v{48+s}")
    a.I("v_bfe_u32 v57, v63, 2, 2")
    a.I("v_and_b32 v56, 3, v63")
    a.I("v_and_b32 v43, 1, v62")
    a.I("v_and_b32 v42, 1, v56")
    a.I("v_lshlrev_b32 v42, 1, v42")
    a.I("v_lshrrev_b32 v41, 1, v56")
    a.I("v_or_b32 v42, v42, v41")
    a.I("v_lshl_add_u32 v41, v59, 3, v57")
    a.I("v_lshlrev_b32 v41, 8, v41")
    a.I("v_lshl_add_u32 v41, v43, 5, v41")
    a.I("v_lshl_add_u32 v41, v42, 3, v41")
    a.I(f"v_add_u32 v41, {VR}, v41")
    a.I(f"s_lshl_b32 s46, s{sJ}, 1")
    a.I("v_xor_b32 v40, s46, v57")
    a.I("v_lshl_add_u32 v52, v40, 6, v41")
    a.I("v_xor_b32 v40, 1, v40")
    a.I("v_lshl_add_u32 v53, v40, 6, v41")
    a.I("v_lshl_add_u32 v41, v59, 2, v57")
    a.I("v_lshlrev_b32 v41, 8, v41")
    a.I("v_lshl_add_u32 v41, v43, 5, v41")
    a.I("v_lshl_add_u32 v41, v56, 3, v41")
    a.I(f"s_lshl_b32 s46, s{sJ}, 13")
    a.I(f"s_add_u32 s46, s46, {VR}")
    a.I("v_add_u32 v41, s46, v41")
    for dt in range(4):
        a.I(f"v_xor_b32 v40, {dt}, v57")
        a.I(f"v_lshl_add_u32 v{vVA+dt}, v40, 6, v41")
    a.I("v_lshrrev_b32 v41, 2, v60")
    a.I("v_mul_u32_u24 v41, 1088, v41")
    a.I("v_and_b32 v40, 3, v60")
    a.I("v_lshl_add_u32 v41, v40, 8, v41")
    a.I(f"s_mul_i32 s46, s{sJ}, {8*1088}")
    a.I(f"s_add_u32 s46, s46, {KBASE}")
    a.I("v_add_u32 v41, s46, v41")
    a.I("v_xor_b32 v40, v40, v59")
    a.I(f"v_lshl_add_u32 v{vKA}, v40, 4, v41")
    a.I("v_xor_b32 v40, 2, v40")
    a.I(f"v_lshl_add_u32 v{vKA+1}, v40, 4, v41")
    a.I(f"v_lshlrev_b32 v{vM+2}, 4, v63")

    qwait = [14, 9, 9, 5, 5, 5, 5, 4]
    vB, vA = 32, 96
    for c in range(8):
        a.I(f"s_waitcnt vmcnt({qwait[c]})")
        a.I("s_barrier")
        xa = (lambda s: (44 + s, 0)) if c % 3 == 2 else (lambda s: (48 + s, XBUF[c % 3]))
        wo_ = WBUF[c % 3] - VR
        def rd(s):
            r, off = xa(s)
            a.I(f"ds_read_b128 {vr(128+4*s,4)}, v{r} offset:{off}")
            for d in range(2):
                base = vA + 8 * s + 4 * d
                a.I(f"ds_read_b64_tr_b16 {vr(base,2)}, v{52+d} offset:{wo_ + 4096*s}")
                a.I(f"ds_read_b64_tr_b16 {vr(base+2,2)}, v{52+d} offset:{wo_ + 4096*s + 1024}")
        rd(0); rd(1)
        if 1 <= c <= 5:
            loader_only(lambda: issue_chunk(c + 2))
        elif c == 6:
            loader_only(lambda: issue_tile(1, None, 1))
        elif c == 7:
            loader_only(lambda: issue_tile(2, None, 2))
        for s in range(4):
            a.I(f"s_waitcnt lgkmcnt({5 if s < 3 else 0})")
            for d in range(2):
                cin = "0" if (c == 0 and s == 0) else vr(16*d, 16)
                a.I(f"v_mfma_f32_32x32x16_bf16 {vr(16*d,16)}, {vr(vA+8*s+4*d,4)}, {vr(128+4*s,4)}, {cin}")
            if s + 2 < 4:
                rd(s + 2)
    for d in range(2):
        for k in range(8):
            a.I(f"v_cvt_pk_bf16_f32 v{32+8*d+k}, v{16*d+2*k}, v{16*d+2*k+1}")
    def unit_base(dst, usreg):
        a.I(f"s_lshl_b32 s{dst}, s{usreg}, 12")
        a.I(f"s_add_u32 s47, s{dst}, {140288 - 7*4096}")
        a.I(f"s_cmp_lt_u32 s{usreg}, 7")
        a.I(f"s_cselect_b32 s{dst}, s{dst}, s47")
    unit_base(46, sWV)
    a.I(f"v_add_u32 v60, s46, v{vM+2}")
    a.I(f"s_lshl_b32 s48, s{sI}, 1")
    unit_base(46, 48)
    a.I(f"v_add_u32 v61, s46, v{vM+2}")
    a.I("s_add_u32 s48, s48, 1")
    unit_base(46, 48)
    a.I(f"v_add_u32 v62, s46, v{vM+2}")
    a.I("s_barrier")
    for k in range(4):
        a.I(f"ds_write_b128 v60, {vr(32+4*k,4)} offset:{1024*k}")
    a.I("s_waitcnt lgkmcnt(0)")
    a.I("s_barrier")
    for k in range(8):
        a.I(f"ds_read_b128 {vr(vQ+4*k,4)}, v{61 + (k>>2)} offset:{1024*(k&3)}")
    a.I("s_waitcnt lgkmcnt(0)")
    for k in range(64):
        a.I(f"v_mov_b32 v{vO+k}, 0")
    a.I(f"v_mov_b32 v{vL0}, 0")
    a.I(f"v_mov_b32 v{vL1}, 0")
    a.I(f"v_mov_b32 v{vM}, {f32(-3.0e38)}")
    a.I(f"v_mov_b32 v{vTHR}, {f32(-3.0e38)}")
    a.I(f"v_mov_b32 v{vNB}, 0")
    a.I(f"s_mov_b32 s{sT}, 0")

    rare = []
    def body(slot, tag, vm, issue):
        ko = KSLOT[slot] - KBASE
        vo = VSLOT[slot] - VR
        a.I(f"s_waitcnt vmcnt({vm})")
        a.I("s_barrier")
        def kread(s):
            a.I(f"ds_read_b128 {vr(vK+4*(s&3),4)}, v{vKA+(s&1)} offset:{ko + 64*(s>>1)}")
        def vread(dst, dt, ks):
            a.I(f"ds_read_b64_tr_b16 {vr(dst,2)}, v{vVA+dt} offset:{vo + 4096*ks}")
            a.I(f"ds_read_b64_tr_b16 {vr(dst+2,2)}, v{vVA+dt} offset:{vo + 4096*ks + 2048}")
        for s in range(4):
            kread(s)
        if issue:
            loader_only(lambda: issue_tile((slot + 3) & 3, sT, slot + 3))
        waits = [3, 3, 3, 3, 3, 4, 5, 6]
        for s in range(8):
            a.I(f"s_waitcnt lgkmcnt({waits[s]})")
            cin = "0" if s == 0 else vr(vS, 16)
            a.I(f"v_mfma_f32_32x32x16_bf16 {vr(vS,16)}, {vr(vK+4*(s&3),4)}, {vr(vQ+4*s,4)}, {cin}")
            if s < 4:
                kread(s + 4)
            else:
                vread(vV + 4 * (s - 4), s - 4, 0)
        a.I("s_waitcnt lgkmcnt(6)")
        for dt in range(4):
            vread(vK + 4 * dt, dt, 1)
        a.I(f"v_max3_f32 v{vMX}, v{vS}, v{vS+1}, v{vS+2}")
        for k in range(6):
            a.I(f"v_max3_f32 v{vMX}, v{vMX}, v{vS+3+2*k}, v{vS+4+2*k}")
        a.I(f"v_max_f32 v{vMX}, v{vMX}, v{vS+15}")
        a.I(f"v_cmp_gt_f32 vcc, v{vMX}, v{vTHR}")
        a.I(f"s_cbranch_vccnz A_rare{tag}")
        a.L(f"A_back{tag}")
        rare.append(tag)
        def sm(lo):
            out = []
            for k in range(lo, lo + 8):
                out.append(f"v_fma_f32 v{vS+k}, v{vS+k}, s{sC}, v{vNB}")
            for k in range(lo, lo + 8):
                out.append(f"v_exp_f32 v{vS+k}, v{vS+k}")
            for k in range(lo, lo + 8, 2):
                out.append(f"v_cvt_pk_bf16_f32 v{vP+k//2}, v{vS+k}, v{vS+k+1}")
            return out
        def adds(lo):
            return [f"v_add_f32 v{vL0+(k&1)}, v{vL0+(k&1)}, v{vS+k}" for k in range(lo, lo + 8)]
        for x in sm(0):
            a.I(x)
        fill = sm(8)
        a.I("s_waitcnt lgkmcnt(8)")
        for dt in range(4):
            a.I(f"v_mfma_f32_32x32x16_bf16 {vr(vO+16*dt,16)}, {vr(vV+4*dt,4)}, {vr(vP,4)}, {vr(vO+16*dt,16)}")
            for x in fill[5*dt:5*dt+5]:
                a.I(x)
        fill = adds(0) + adds(8)
        a.I("s_waitcnt lgkmcnt(0)")
        for dt in range(4):
            a.I(f"v_mfma_f32_32x32x16_bf16 {vr(vO+16*dt,16)}, {vr(vK+4*dt,4)}, {vr(vP+4,4)}, {vr(vO+16*dt,16)}")
            for x in fill[4*dt:4*dt+4]:
                a.I(x)

    a.L("A_loop")
    for u in range(4):
        body(u, f"L{u}", 8, True)
    a.I(f"s_add_u32 s{sT}, s{sT}, 4")
    a.I(f"s_cmp_lt_u32 s{sT}, 12")
    a.I("s_cbranch_scc1 A_loop")
    body(0, "P0", 8, True)
    body(1, "P1", 8, False)
    body(2, "P2", 4, False)
    body(3, "P3", 0, False)

    vLn = vM + 2
    a.I(f"v_add_f32 v{vL0}, v{vL0}, v{vL1}")
    a.I(f"v_mov_b32 v{vL1}, v{vL0}")
    a.I(f"v_permlane32_swap_b32 v{vL0}, v{vL1}")
    a.I(f"v_add_f32 v{vL1}, v{vL0}, v{vL1}")
    a.I(f"v_mov_b32 v{vL0}, v{vNB}")
    a.I(f"s_lshl_b32 s46, s{sWV}, 13")
    a.I(f"s_add_u32 s46, s46, {MERGE}")
    a.I(f"v_add_u32 v96, s46, v{vLn}")
    a.I(f"s_xor_b32 s47, s{sWV}, 1")
    a.I("s_lshl_b32 s46, s47, 13")
    a.I(f"s_add_u32 s46, s46, {MERGE}")
    a.I(f"v_add_u32 v97, s46, v{vLn}")
    a.I(f"v_lshrrev_b32 v98, 1, v{vLn}")
    a.I(f"s_lshl_b32 s46, s{sWV}, 9")
    a.I(f"s_add_u32 s46, s46, {MLBUF}")
    a.I("v_add_u32 v99, s46, v98")
    a.I("s_lshl_b32 s46, s47, 9")
    a.I(f"s_add_u32 s46, s46, {MLBUF}")
    a.I("v_add_u32 v98, s46, v98")
    a.I(f"ds_write_b64 v99, {vr(vL0,2)}")
    a.I(f"v_lshrrev_b32 v100, 4, v{vLn}")
    a.I("v_bfe_u32 v101, v100, 4, 1")
    a.I("v_lshlrev_b32 v101, 17, v101")
    a.I("v_and_b32 v102, 15, v100")
    a.I("v_lshl_add_u32 v101, v102, 4, v101")
    a.I("v_lshrrev_b32 v102, 5, v100")
    a.I("v_lshl_add_u32 v101, v102, 8, v101")
    a.I(f"s_mul_i32 s46, s{sB}, 12")
    a.I(f"s_lshl_b32 s47, s{sI}, 1")
    a.I("s_add_u32 s46, s46, s47")
    a.I("s_lshl_b32 s46, s46, 5")
    a.I(f"s_add_u32 s46, s46, s{sH}")
    a.I("s_lshl_b32 s46, s46, 12")
    a.I(f"s_lshl_b32 s47, s{sJ}, 11")
    a.I("s_add_u32 s46, s46, s47")
    a.I(f"s_cmp_eq_u32 s{sJ}, 1")
    a.I("s_cbranch_scc1 A_ep1")
    for j in range(2):
        if j == 1:
            a.L("A_ep1")
        keep, send = vO + 32 * j, vO + 32 * (1 - j)
        for k in range(8):
            a.I(f"ds_write_b128 v96, {vr(send+4*k,4)} offset:{1024*k}")
        a.I("s_waitcnt lgkmcnt(0)")
        a.I("s_barrier")
        a.I("ds_read_b64 v[104:105], v98")
        for k in range(8):
            a.I(f"ds_read_b128 {vr(vQ+4*k,4)}, v97 offset:{1024*k}")
        a.I("s_waitcnt lgkmcnt(8)")
        a.I(f"v_min_f32 v106, v104, v{vL0}")
        a.I(f"v_sub_f32 v107, v106, v{vL0}")
        a.I("v_sub_f32 v108, v106, v104")
        a.I("v_exp_f32 v107, v107")
        a.I("v_exp_f32 v108, v108")
        a.I(f"v_mul_f32 v109, v107, v{vL1}")
        a.I("v_fma_f32 v109, v108, v105, v109")
        a.I("v_rcp_f32 v109, v109")
        a.I("v_mul_f32 v107, v107, v109")
        a.I("v_mul_f32 v108, v108, v109")
        for k in range(32):
            a.I(f"v_mul_f32 v{keep+k}, v{keep+k}, v107")
        for k in range(8):
            a.I(f"s_waitcnt lgkmcnt({7-k})")
            for e in range(4):
                a.I(f"v_fma_f32 v{keep+4*k+e}, v{vQ+4*k+e}, v108, v{keep+4*k+e}")
        for c in range(4):
            for e in range(4):
                a.I(f"v_cvt_pk_bf16_f32 v{112+4*c+e}, v{keep+8*c+2*e}, v{keep+8*c+2*e+1}")
            a.I(f"buffer_store_dwordx4 {vr(112+4*c,4)}, v101, {sr(sO,4)}, s46 offen offset:{512*c}")
        a.I("s_endpgm")
    for tag in rare:
        a.L(f"A_rare{tag}")
        a.I(f"v_mov_b32 v{vP}, v{vMX}")
        a.I(f"v_permlane32_swap_b32 v{vMX}, v{vP}")
        a.I(f"v_max3_f32 v{vMX}, v{vMX}, v{vP}, v{vM}")
        a.I(f"v_sub_f32 v{vP}, v{vM}, v{vMX}")
        a.I(f"v_mul_f32 v{vP}, s{sC}, v{vP}")
        a.I(f"v_exp_f32 v{vP}, v{vP}")
        a.I(f"v_mov_b32 v{vM}, v{vMX}")
        a.I(f"v_mul_f32 v{vNB}, s{sC}, v{vMX}")
        a.I(f"v_sub_f32 v{vNB}, 0, v{vNB}")
        a.I(f"v_add_f32 v{vTHR}, s{sTC}, v{vMX}")
        a.I(f"v_mul_f32 v{vL0}, v{vL0}, v{vP}")
        a.I(f"v_mul_f32 v{vL1}, v{vL1}, v{vP}")
        for k in range(64):
            a.I(f"v_mul_f32 v{vO+k}, v{vO+k}, v{vP}")
        a.I(f"s_branch A_back{tag}")
    a.L("A_done")
    a.I("s_endpgm")


def gen_oproj(a, opt):
    NS = 4
    WREG = 20480
    vAcc, vOf, vWf = 0, 48, 96
    vOA, vWD, vWA = 112, 113, 114
    sO, sW, sOut = 16, 20, 24
    sWV, sRT, sCT = 28, 29, 30
    a.L("oproj_kernel")
    a.I("s_cmp_ge_u32 s2, 256")
    a.I("s_cbranch_scc1 B_done")
    a.I("s_load_dwordx4 s[4:7], s[0:1], 32")
    a.I("s_load_dwordx2 s[8:9], s[0:1], 56")
    a.I("v_lshrrev_b32 v120, 6, v0")
    a.I("v_and_b32 v121, 63, v0")
    a.I(f"v_readfirstlane_b32 s{sWV}, v120")
    a.I("s_bfe_u32 s10, s2, 0x20001")
    a.I("s_lshl_b32 s10, s10, 3")
    a.I("s_bfe_u32 s11, s2, 0x30003")
    a.I(f"s_add_u32 s{sRT}, s10, s11")
    a.I("s_and_b32 s10, s2, 1")
    a.I("s_lshl_b32 s10, s10, 2")
    a.I("s_lshr_b32 s11, s2, 6")
    a.I(f"s_add_u32 s{sCT}, s10, s11")
    a.I(f"v_lshlrev_b32 v{vOA}, 4, v121")
    a.I("v_lshrrev_b32 v122, 4, v121")
    a.I("v_lshlrev_b32 v123, 1, v122")
    a.I("v_and_b32 v124, 7, v121")
    a.I("v_xor_b32 v123, v123, v124")
    a.I("v_lshlrev_b32 v123, 4, v123")
    a.I("v_lshrrev_b32 v124, 3, v121")
    a.I(f"v_lshl_add_u32 v{vWD}, v124, 10, v123")
    a.I("v_bfe_u32 v123, v121, 2, 2")
    a.I("v_and_b32 v124, 1, v122")
    a.I("v_lshl_add_u32 v123, v124, 2, v123")
    a.I("v_lshrrev_b32 v125, 1, v123")
    a.I("v_lshrrev_b32 v124, 1, v122")
    a.I("v_lshl_add_u32 v123, v124, 4, v123")
    a.I("v_lshlrev_b32 v123, 7, v123")
    a.I("v_and_b32 v124, 3, v121")
    a.I("v_lshl_add_u32 v123, v124, 3, v123")
    a.I(f"s_mul_i32 s31, s{sWV}, {WREG}")
    a.I("v_add_u32 v123, s31, v123")
    for nt in range(4):
        a.I(f"v_xor_b32 v124, {nt}, v125")
        a.I(f"v_lshl_add_u32 v{vWA+nt}, v124, 5, v123")
    a.I("s_waitcnt lgkmcnt(0)")
    srd(a, sO, 8, 9, 12582912)
    srd(a, sW, 4, 5, 4194304)
    srd(a, sOut, 6, 7, 1572864)
    a.I(f"s_mul_i32 s32, s{sRT}, {3*32*4096}")
    a.I(f"s_lshl_b32 s10, s{sWV}, 14")
    a.I("s_add_u32 s32, s32, s10")
    a.I("s_add_u32 s33, s32, 131072")
    a.I("s_add_u32 s34, s32, 262144")
    a.I(f"s_lshl_b32 s35, s{sWV}, 19")
    a.I(f"s_lshl_b32 s10, s{sCT}, 7")
    a.I("s_add_u32 s35, s35, s10")

    def issue(k):
        sl = k % NS
        for pp in range(4):
            a.I(f"s_add_u32 m0, s31, {sl*4096 + pp*1024}")
            a.I(f"s_add_u32 s10, s35, {(32*k + 8*pp)*1024}")
            a.I(f"buffer_load_dwordx4 v{vWD}, {sr(sW,4)}, s10 offen lds")
        for r3 in range(3):
            if k % 4 == 0 and k > 0:
                a.I(f"s_add_u32 s{32+r3}, s{32+r3}, 4096")
            a.I(f"buffer_load_dwordx4 {vr(vOf+12*sl+4*r3,4)}, v{vOA}, {sr(sO,4)}, s{32+r3} offen offset:{1024*(k%4)}")
    for k in range(NS):
        issue(k)
    for k in range(16):
        sl = k % NS
        left = min(NS - 1, 15 - k)
        a.I(f"s_waitcnt vmcnt({7*left})")
        for nt in range(4):
            a.I(f"ds_read_b64_tr_b16 {vr(vWf+4*nt,2)}, v{vWA+nt} offset:{sl*4096}")
            a.I(f"ds_read_b64_tr_b16 {vr(vWf+4*nt+2,2)}, v{vWA+nt} offset:{sl*4096+1024}")
        for nt in range(4):
            a.I(f"s_waitcnt lgkmcnt({6-2*nt})")
            for r3 in range(3):
                acc = vr(vAcc + 4 * (3 * nt + r3), 4)
                cin = "0" if k == 0 else acc
                a.I(f"v_mfma_f32_16x16x32_bf16 {acc}, {vr(vWf+4*nt,4)}, {vr(vOf+12*sl+4*r3,4)}, {cin}")
        if k + NS < 16:
            issue(k + NS)
    a.I(f"v_add_u32 v120, s31, v{vOA}")
    for t in range(12):
        a.I(f"ds_write_b128 v120, {vr(vAcc+4*t,4)} offset:{1024*t}")
    a.I("s_waitcnt lgkmcnt(0)")
    a.I("s_barrier")
    a.I(f"s_cmp_ge_u32 s{sWV}, 6")
    a.I("s_cbranch_scc1 B_done")
    a.I(f"s_lshl_b32 s10, s{sWV}, 6")
    a.I("v_add_u32 v100, s10, v121")
    a.I("v_lshrrev_b32 v101, 3, v100")
    a.I("v_and_b32 v102, 7, v100")
    a.I("v_lshrrev_b32 v103, 1, v102")
    a.I("v_mul_u32_u24 v103, 3, v103")
    a.I("v_lshrrev_b32 v104, 4, v101")
    a.I("v_add_u32 v103, v103, v104")
    a.I("v_lshlrev_b32 v103, 10, v103")
    a.I("v_and_b32 v104, 1, v102")
    a.I("v_lshl_add_u32 v103, v104, 9, v103")
    a.I("v_and_b32 v104, 15, v101")
    a.I("v_lshl_add_u32 v103, v104, 4, v103")
    a.I(f"v_add_u32 v105, {3*WREG}, v103")
    a.I(f"v_add_u32 v106, {6*WREG}, v103")
    for w in range(8):
        base = [103, 105, 106][w // 3]
        off = (w % 3) * WREG
        a.I(f"ds_read_b128 {vr(8*w,4)}, v{base} offset:{off}")
        a.I(f"ds_read_b128 {vr(8*w+4,4)}, v{base} offset:{off+256}")
        if w == 6:
            a.I("s_waitcnt lgkmcnt(8)")
    a.I("v_lshlrev_b32 v101, 10, v101")
    a.I("v_lshl_add_u32 v101, v102, 4, v101")
    a.I(f"s_mul_i32 s10, s{sRT}, {48*1024}")
    a.I(f"s_lshl_b32 s11, s{sCT}, 7")
    a.I("s_add_u32 s10, s10, s11")
    for w in range(1, 8):
        a.I(f"s_waitcnt lgkmcnt({14-2*w})")
        for e in range(8):
            a.I(f"v_add_f32 v{e}, v{e}, v{8*w+e}")
    for e in range(4):
        a.I(f"v_cvt_pk_bf16_f32 v{64+e}, v{2*e}, v{2*e+1}")
    a.I(f"buffer_store_dwordx4 v[64:67], v101, {sr(sOut,4)}, s10 offen")
    a.L("B_done")
    a.I("s_endpgm")


HEADER = """; Kernarg layout for this problem (64 bytes, ptrs only, base s[0:1]):
; @launch kernel=attn_kernel grid=(256,1,1) block=(768,1,1) lds=163840
; @launch kernel=oproj_kernel grid=(256,1,1) block=(512,1,1) lds=163840
.amdgcn_target "amdgcn-amd-amdhsa--gfx950"
.text
"""

def kd(name, nv, ns):
    return f""".p2align 6
.amdhsa_kernel {name}
  .amdhsa_next_free_vgpr {nv}
  .amdhsa_next_free_sgpr {ns}
  .amdhsa_accum_offset {(nv+3)//4*4}
  .amdhsa_group_segment_fixed_size 0
  .amdhsa_kernarg_size 64
  .amdhsa_user_sgpr_count 2
  .amdhsa_user_sgpr_kernarg_segment_ptr 1
  .amdhsa_system_sgpr_workgroup_id_x 1
.end_amdhsa_kernel
"""

def build(opt):
    out = HEADER
    for name, fn in (("attn_kernel", gen_attn), ("oproj_kernel", gen_oproj)):
        a = Asm()
        fn(a, opt)
        n = a.pad_hazards()
        out += f".globl {name}\n.p2align 8\n.type {name},@function\n" + a.text()
    out += '.section .rodata,"a"\n' + kd("attn_kernel", 168, 64) + kd("oproj_kernel", 128, 48)
    return out

if __name__ == "__main__":
    opt = {}
    path = sys.argv[1]
    for x in sys.argv[2:]:
        k, _, v = x.partition("=")
        opt[k] = int(v) if v else 1
    open(path, "w").write(build(opt))
```

```python
import struct, sys, math
from asmlib import Asm, vr, sr

def f32(x):
    return "0x%08x" % struct.unpack("<I", struct.pack("<f", x))[0]

CSCALE = (128 ** -0.5) * math.log2(math.e)
THRESH = 8.0

XBUF = {1: 0, 0: 24576, 2: 66560}
VR = 91136
WBUF = {1: VR + 3 * 16384, 0: VR + 2 * 16384, 2: VR + 1 * 16384}
KSLOT = [49152, 66560, 31744, 7168]
VSLOT = [VR + 16384 * n for n in range(4)]
KBASE = 7168
MERGE = 24576
MLBUF = 122880

def srd(a, d, base_lo, base_hi, nrec):
    a.I(f"s_mov_b32 s{d}, s{base_lo}")
    a.I(f"s_and_b32 s{d+1}, s{base_hi}, 0xffff")
    if isinstance(nrec, int):
        a.I(f"s_mov_b32 s{d+2}, {nrec}")
    else:
        a.I(f"s_mov_b32 s{d+2}, {nrec}")
    a.I(f"s_mov_b32 s{d+3}, 0x00020000")

def gen_attn(a, opt):
    TIMER = "s_memtime" if opt.get("clk") else "s_memrealtime"
    NT = " nt" if opt.get("nt") else ""
    vO, vQ, vS, vK, vV = 0, 64, 96, 112, 128
    vKA, vVA, vKD, vVD = 144, 146, 150, 151
    vNB, vTHR, vL0, vL1, vM = 152, 153, 154, 155, 164
    vP, vMX = 156, 165
    sX, sW, sK, sV, sO = 16, 20, 24, 28, 32
    sWV, sB, sH, sI, sJ = 36, 37, 38, 39, 40
    sW1088, sW1024, sOff0, sOff1, sT = 41, 42, 43, 44, 45
    sC, sTC, sRot = 50, 51, 52

    nst = [0]
    SB = 56
    def stamp(k=None):
        if opt.get("stamps"):
            if k is None:
                k = nst[0]
                nst[0] += 1
            a.I(f"s_memrealtime s[{SB+4*k}:{SB+4*k+1}]")
            a.I(f"s_memtime s[{SB+4*k+2}:{SB+4*k+3}]")
            a.I("s_waitcnt lgkmcnt(0)")
    def dump_stamps():
        if not opt.get("stamps"):
            return
        n = opt["stamps"]
        stamp(n - 1)
        a.I(f"s_lshl_b32 s46, s2, 4")
        a.I(f"s_add_u32 s46, s46, s{sWV}")
        a.I(f"s_mul_i32 s46, s46, {16*n}")
        a.I(f"s_add_u32 s46, s46, {1<<27}")
        a.I(f"s_mov_b32 s{sO+2}, 0x10000000")
        a.I("v_mov_b32 v130, 0")
        for k in range(2*n):
            a.I(f"v_mov_b32 v128, s{SB+2*k}")
            a.I(f"v_mov_b32 v129, s{SB+1+2*k}")
            a.I(f"buffer_store_dwordx2 v[128:129], v130, {sr(sO,4)}, s46 offen offset:{8*k}")
            a.I("s_nop 1")
    a.L("attn_kernel")
    a.I("s_cmp_ge_u32 s2, 256")
    a.I("s_cbranch_scc1 A_done")
    stamp()
    a.I("s_load_dwordx8 s[4:11], s[0:1], 0")
    a.I("s_load_dwordx2 s[12:13], s[0:1], 56")
    a.I("v_lshrrev_b32 v60, 6, v0")
    a.I("v_and_b32 v63, 63, v0")
    a.I(f"v_readfirstlane_b32 s{sWV}, v60")
    a.I("s_and_b32 s46, s2, 1")
    a.I("s_lshl_b32 s46, s46, 2")
    a.I("s_bfe_u32 s47, s2, 0x20003")
    a.I(f"s_add_u32 s{sB}, s46, s47")
    a.I("s_bfe_u32 s46, s2, 0x20001")
    a.I("s_lshl_b32 s46, s46, 3")
    a.I("s_lshr_b32 s47, s2, 5")
    a.I(f"s_add_u32 s{sH}, s46, s47")
    a.I(f"s_lshr_b32 s{sI}, s{sWV}, 1")
    a.I(f"s_and_b32 s{sJ}, s{sWV}, 1")
    a.I(f"s_mul_i32 s{sW1088}, s{sWV}, 1088")
    a.I(f"s_lshl_b32 s{sW1024}, s{sWV}, 10")
    a.I(f"s_mov_b32 s{sC}, {f32(CSCALE)}")
    a.I(f"s_mov_b32 s{sTC}, {f32(THRESH / CSCALE)}")
    if opt.get("rot"):
        a.I(f"s_bfe_u32 s{sRot}, s2, 0x40003")
    else:
        a.I(f"s_mov_b32 s{sRot}, 0")
    a.I("v_lshrrev_b32 v62, 4, v63")
    a.I("v_and_b32 v61, 15, v63")
    a.I("v_xor_b32 v60, v61, v62")
    a.I("v_lshlrev_b32 v60, 4, v60")
    a.I(f"v_lshl_add_u32 v{vKD}, v62, 8, v60")
    a.I("v_lshlrev_b32 v60, 2, v62")
    a.I("v_xor_b32 v60, v61, v60")
    a.I("v_lshlrev_b32 v60, 4, v60")
    a.I(f"v_lshl_add_u32 v{vVD}, v62, 8, v60")
    a.I("v_lshl_add_u32 v55, v62, 13, v60")
    a.I(f"s_lshl_b32 s46, s{sJ}, 2")
    a.I("v_add_u32 v60, s46, v62")
    a.I("v_and_b32 v59, 7, v63")
    a.I("v_xor_b32 v60, v59, v60")
    a.I("v_lshlrev_b32 v60, 4, v60")
    a.I("v_lshrrev_b32 v59, 3, v63")
    a.I("v_lshl_add_u32 v54, v59, 10, v60")
    a.I("s_waitcnt lgkmcnt(0)")
    a.I(f"s_mul_i32 s46, s{sB}, 196608")
    a.I("s_add_u32 s4, s4, s46")
    a.I("s_addc_u32 s5, s5, 0")
    srd(a, sX, 4, 5, 196608)
    a.I(f"s_lshl_b32 s46, s{sH}, 8")
    a.I("s_add_u32 s10, s10, s46")
    a.I("s_addc_u32 s11, s11, 0")
    a.I("s_sub_u32 s47, 4194304, s46")
    srd(a, sW, 10, 11, "s47")
    a.I(f"s_lshl_b32 s46, s{sB}, 5")
    a.I(f"s_add_u32 s46, s46, s{sH}")
    a.I("s_lshl_b32 s46, s46, 18")
    a.I("s_add_u32 s6, s6, s46")
    a.I("s_addc_u32 s7, s7, 0")
    srd(a, sK, 6, 7, 262144)
    a.I("s_add_u32 s8, s8, s46")
    a.I("s_addc_u32 s9, s9, 0")
    srd(a, sV, 8, 9, 262144)
    srd(a, sO, 12, 13, 12582912)

    a.I(f"s_lshl_b32 s48, s{sWV}, 13")
    a.I(f"s_lshl_b32 s49, s{sWV}, 15")

    def issue_chunk(c):
        xb, wb = XBUF[c % 3], WBUF[c % 3]
        for k in range(3):
            a.I(f"s_add_u32 m0, s{sW1024}, {xb + 8192 * k}")
            a.I(f"s_add_u32 s46, s48, {65536 * k + 128 * c}")
            a.I(f"buffer_load_dwordx4 v54, {sr(sX,4)}, s46 offen lds")
        for k in range(2):
            a.I(f"s_add_u32 m0, s{sW1024}, {wb + 8192 * k}")
            a.I(f"s_add_u32 s46, s49, {(64 * c + 32 * k) * 8192}")
            a.I(f"buffer_load_dwordx4 v55, {sr(sW,4)}, s46 offen lds")

    def issue_tile(slot, tile_sreg=None, tile_imm=None):
        if tile_sreg is not None:
            a.I(f"s_add_u32 s46, s{tile_sreg}, s{sRot}")
            if tile_imm:
                a.I(f"s_add_u32 s46, s46, {tile_imm}")
        else:
            a.I(f"s_add_u32 s46, s{sRot}, {tile_imm}")
        a.I("s_and_b32 s46, s46, 15")
        a.I("s_lshl_b32 s46, s46, 14")
        a.I(f"s_add_u32 s{sOff0}, s46, s{sW1024}")
        a.I(f"s_add_u32 s{sOff1}, s{sOff0}, 8192")
        a.I(f"s_add_u32 m0, s{sW1088}, {KSLOT[slot]}")
        a.I(f"buffer_load_dwordx4 v{vKD}, {sr(sK,4)}, s{sOff0} offen{NT} lds")
        a.I(f"s_add_u32 m0, s{sW1088}, {KSLOT[slot] + 8 * 1088}")
        a.I(f"buffer_load_dwordx4 v{vKD}, {sr(sK,4)}, s{sOff1} offen{NT} lds")
        a.I(f"s_add_u32 m0, s{sW1024}, {VSLOT[slot]}")
        a.I(f"buffer_load_dwordx4 v{vVD}, {sr(sV,4)}, s{sOff0} offen{NT} lds")
        a.I(f"s_add_u32 m0, s{sW1024}, {VSLOT[slot] + 8192}")
        a.I(f"buffer_load_dwordx4 v{vVD}, {sr(sV,4)}, s{sOff1} offen{NT} lds")

    nskip = [0]
    def loader_only(fn):
        lab = f"A_skip{nskip[0]}"
        nskip[0] += 1
        a.I(f"s_cmp_ge_u32 s{sWV}, 8")
        a.I(f"s_cbranch_scc1 {lab}")
        fn()
        a.L(lab)

    def pro():
        issue_chunk(0); issue_chunk(1); issue_chunk(2); issue_tile(0, None, 0)
    loader_only(pro)

    a.I("v_and_b32 v60, 31, v63")
    a.I("v_lshrrev_b32 v59, 5, v63")
    a.I(f"s_lshl_b32 s46, s{sI}, 12")
    a.I("v_lshl_add_u32 v58, v60, 7, s46")
    a.I("v_bfe_u32 v57, v60, 1, 3")
    a.I("v_xor_b32 v57, v57, v59")
    for s in range(4):
        a.I(f"v_xor_b32 v56, {2*s}, v57")
        a.I(f"v_lshl_add_u32 v{48+s}, v56, 4, v58")
    for s in range(4):
        a.I(f"v_add_u32 v{44+s}, {XBUF[2]}, v{48+s}")
    a.I("v_bfe_u32 v57, v63, 2, 2")
    a.I("v_and_b32 v56, 3, v63")
    a.I("v_and_b32 v43, 1, v62")
    a.I("v_and_b32 v42, 1, v56")
    a.I("v_lshlrev_b32 v42, 1, v42")
    a.I("v_lshrrev_b32 v41, 1, v56")
    a.I("v_or_b32 v42, v42, v41")
    a.I("v_lshl_add_u32 v41, v59, 3, v57")
    a.I("v_lshlrev_b32 v41, 8, v41")
    a.I("v_lshl_add_u32 v41, v43, 5, v41")
    a.I("v_lshl_add_u32 v41, v42, 3, v41")
    a.I(f"v_add_u32 v41, {VR}, v41")
    a.I(f"s_lshl_b32 s46, s{sJ}, 1")
    a.I("v_xor_b32 v40, s46, v57")
    a.I("v_lshl_add_u32 v52, v40, 6, v41")
    a.I("v_xor_b32 v40, 1, v40")
    a.I("v_lshl_add_u32 v53, v40, 6, v41")
    a.I("v_lshl_add_u32 v41, v59, 2, v57")
    a.I("v_lshlrev_b32 v41, 8, v41")
    a.I("v_lshl_add_u32 v41, v43, 5, v41")
    a.I("v_lshl_add_u32 v41, v56, 3, v41")
    a.I(f"s_lshl_b32 s46, s{sJ}, 13")
    a.I(f"s_add_u32 s46, s46, {VR}")
    a.I("v_add_u32 v41, s46, v41")
    for dt in range(4):
        a.I(f"v_xor_b32 v40, {dt}, v57")
        a.I(f"v_lshl_add_u32 v{vVA+dt}, v40, 6, v41")
    a.I("v_lshrrev_b32 v41, 2, v60")
    a.I("v_mul_u32_u24 v41, 1088, v41")
    a.I("v_and_b32 v40, 3, v60")
    a.I("v_lshl_add_u32 v41, v40, 8, v41")
    a.I(f"s_mul_i32 s46, s{sJ}, {8*1088}")
    a.I(f"s_add_u32 s46, s46, {KBASE}")
    a.I("v_add_u32 v41, s46, v41")
    a.I("v_xor_b32 v40, v40, v59")
    a.I(f"v_lshl_add_u32 v{vKA}, v40, 4, v41")
    a.I("v_xor_b32 v40, 2, v40")
    a.I(f"v_lshl_add_u32 v{vKA+1}, v40, 4, v41")
    a.I(f"v_lshlrev_b32 v{vM+2}, 4, v63")

    qwait = [14, 9, 9, 5, 5, 5, 5, 4]
    vB, vA = 32, 96
    for c in range(8):
        a.I(f"s_waitcnt vmcnt({qwait[c]})")
        a.I("s_barrier")
        if c in (0, 1, 4, 7): stamp()
        xa = (lambda s: (44 + s, 0)) if c % 3 == 2 else (lambda s: (48 + s, XBUF[c % 3]))
        wo_ = WBUF[c % 3] - VR
        def rd(s):
            r, off = xa(s)
            a.I(f"ds_read_b128 {vr(128+4*s,4)}, v{r} offset:{off}")
            for d in range(2):
                base = vA + 8 * s + 4 * d
                a.I(f"ds_read_b64_tr_b16 {vr(base,2)}, v{52+d} offset:{wo_ + 4096*s}")
                a.I(f"ds_read_b64_tr_b16 {vr(base+2,2)}, v{52+d} offset:{wo_ + 4096*s + 1024}")
        rd(0); rd(1)
        if 1 <= c <= 5:
            loader_only(lambda: issue_chunk(c + 2))
        elif c == 6:
            loader_only(lambda: issue_tile(1, None, 1))
        elif c == 7:
            loader_only(lambda: issue_tile(2, None, 2))
        for s in range(4):
            a.I(f"s_waitcnt lgkmcnt({5 if s < 3 else 0})")
            for d in range(2):
                cin = "0" if (c == 0 and s == 0) else vr(16*d, 16)
                a.I(f"v_mfma_f32_32x32x16_bf16 {vr(16*d,16)}, {vr(vA+8*s+4*d,4)}, {vr(128+4*s,4)}, {cin}")
            if s + 2 < 4:
                rd(s + 2)
    for d in range(2):
        for k in range(8):
            a.I(f"v_cvt_pk_bf16_f32 v{32+8*d+k}, v{16*d+2*k}, v{16*d+2*k+1}")
    def unit_base(dst, usreg):
        a.I(f"s_lshl_b32 s{dst}, s{usreg}, 12")
        a.I(f"s_add_u32 s47, s{dst}, {140288 - 7*4096}")
        a.I(f"s_cmp_lt_u32 s{usreg}, 7")
        a.I(f"s_cselect_b32 s{dst}, s{dst}, s47")
    unit_base(46, sWV)
    a.I(f"v_add_u32 v60, s46, v{vM+2}")
    a.I(f"s_lshl_b32 s48, s{sI}, 1")
    unit_base(46, 48)
    a.I(f"v_add_u32 v61, s46, v{vM+2}")
    a.I("s_add_u32 s48, s48, 1")
    unit_base(46, 48)
    a.I(f"v_add_u32 v62, s46, v{vM+2}")
    a.I("s_barrier")
    for k in range(4):
        a.I(f"ds_write_b128 v60, {vr(32+4*k,4)} offset:{1024*k}")
    a.I("s_waitcnt lgkmcnt(0)")
    a.I("s_barrier")
    for k in range(8):
        a.I(f"ds_read_b128 {vr(vQ+4*k,4)}, v{61 + (k>>2)} offset:{1024*(k&3)}")
    a.I("s_waitcnt lgkmcnt(0)")
    for k in range(64):
        a.I(f"v_mov_b32 v{vO+k}, 0")
    a.I(f"v_mov_b32 v{vL0}, 0")
    a.I(f"v_mov_b32 v{vL1}, 0")
    a.I(f"v_mov_b32 v{vM}, {f32(-3.0e38)}")
    a.I(f"v_mov_b32 v{vTHR}, {f32(-3.0e38)}")
    a.I(f"v_mov_b32 v{vNB}, 0")
    a.I(f"s_mov_b32 s{sT}, 0")

    rare = []
    def body(slot, tag, vm, issue):
        ko = KSLOT[slot] - KBASE
        vo = VSLOT[slot] - VR
        a.I(f"s_waitcnt vmcnt({vm})")
        a.I("s_barrier")
        def kread(s):
            a.I(f"ds_read_b128 {vr(vK+4*(s&3),4)}, v{vKA+(s&1)} offset:{ko + 64*(s>>1)}")
        def vread(dst, dt, ks):
            a.I(f"ds_read_b64_tr_b16 {vr(dst,2)}, v{vVA+dt} offset:{vo + 4096*ks}")
            a.I(f"ds_read_b64_tr_b16 {vr(dst+2,2)}, v{vVA+dt} offset:{vo + 4096*ks + 2048}")
        for s in range(4):
            kread(s)
        if issue:
            loader_only(lambda: issue_tile((slot + 3) & 3, sT, slot + 3))
        waits = [3, 3, 3, 3, 3, 4, 5, 6]
        for s in range(8):
            a.I(f"s_waitcnt lgkmcnt({waits[s]})")
            cin = "0" if s == 0 else vr(vS, 16)
            a.I(f"v_mfma_f32_32x32x16_bf16 {vr(vS,16)}, {vr(vK+4*(s&3),4)}, {vr(vQ+4*s,4)}, {cin}")
            if s < 4:
                kread(s + 4)
            else:
                vread(vV + 4 * (s - 4), s - 4, 0)
        a.I("s_waitcnt lgkmcnt(6)")
        for dt in range(4):
            vread(vK + 4 * dt, dt, 1)
        a.I(f"v_max3_f32 v{vMX}, v{vS}, v{vS+1}, v{vS+2}")
        for k in range(6):
            a.I(f"v_max3_f32 v{vMX}, v{vMX}, v{vS+3+2*k}, v{vS+4+2*k}")
        a.I(f"v_max_f32 v{vMX}, v{vMX}, v{vS+15}")
        a.I(f"v_cmp_gt_f32 vcc, v{vMX}, v{vTHR}")
        a.I(f"s_cbranch_vccnz A_rare{tag}")
        a.L(f"A_back{tag}")
        rare.append(tag)
        def sm(lo):
            out = []
            for k in range(lo, lo + 8):
                out.append(f"v_fma_f32 v{vS+k}, v{vS+k}, s{sC}, v{vNB}")
            for k in range(lo, lo + 8):
                out.append(f"v_exp_f32 v{vS+k}, v{vS+k}")
            for k in range(lo, lo + 8, 2):
                out.append(f"v_cvt_pk_bf16_f32 v{vP+k//2}, v{vS+k}, v{vS+k+1}")
            return out
        def adds(lo):
            return [f"v_add_f32 v{vL0+(k&1)}, v{vL0+(k&1)}, v{vS+k}" for k in range(lo, lo + 8)]
        for x in sm(0):
            a.I(x)
        fill = sm(8)
        a.I("s_waitcnt lgkmcnt(8)")
        for dt in range(4):
            a.I(f"v_mfma_f32_32x32x16_bf16 {vr(vO+16*dt,16)}, {vr(vV+4*dt,4)}, {vr(vP,4)}, {vr(vO+16*dt,16)}")
            for x in fill[5*dt:5*dt+5]:
                a.I(x)
        fill = adds(0) + adds(8)
        a.I("s_waitcnt lgkmcnt(0)")
        for dt in range(4):
            a.I(f"v_mfma_f32_32x32x16_bf16 {vr(vO+16*dt,16)}, {vr(vK+4*dt,4)}, {vr(vP+4,4)}, {vr(vO+16*dt,16)}")
            for x in fill[4*dt:4*dt+4]:
                a.I(x)

    stamp()
    if opt.get("stamps"):
        for rep in range(3):
            for u in range(4):
                body(u, f"L{rep}{u}", 8, True)
            a.I(f"s_add_u32 s{sT}, s{sT}, 4")
            stamp()
    else:
        a.L("A_loop")
        for u in range(4):
            body(u, f"L{u}", 8, True)
        a.I(f"s_add_u32 s{sT}, s{sT}, 4")
        a.I(f"s_cmp_lt_u32 s{sT}, 12")
        a.I("s_cbranch_scc1 A_loop")
    body(0, "P0", 8, True)
    body(1, "P1", 8, False)
    body(2, "P2", 4, False)
    body(3, "P3", 0, False)

    stamp()
    vLn = vM + 2
    a.I(f"v_add_f32 v{vL0}, v{vL0}, v{vL1}")
    a.I(f"v_mov_b32 v{vL1}, v{vL0}")
    a.I(f"v_permlane32_swap_b32 v{vL0}, v{vL1}")
    a.I(f"v_add_f32 v{vL1}, v{vL0}, v{vL1}")
    a.I(f"v_mov_b32 v{vL0}, v{vNB}")
    a.I(f"s_lshl_b32 s46, s{sWV}, 13")
    a.I(f"s_add_u32 s46, s46, {MERGE}")
    a.I(f"v_add_u32 v96, s46, v{vLn}")
    a.I(f"s_xor_b32 s47, s{sWV}, 1")
    a.I("s_lshl_b32 s46, s47, 13")
    a.I(f"s_add_u32 s46, s46, {MERGE}")
    a.I(f"v_add_u32 v97, s46, v{vLn}")
    a.I(f"v_lshrrev_b32 v98, 1, v{vLn}")
    a.I(f"s_lshl_b32 s46, s{sWV}, 9")
    a.I(f"s_add_u32 s46, s46, {MLBUF}")
    a.I("v_add_u32 v99, s46, v98")
    a.I("s_lshl_b32 s46, s47, 9")
    a.I(f"s_add_u32 s46, s46, {MLBUF}")
    a.I("v_add_u32 v98, s46, v98")
    a.I(f"ds_write_b64 v99, {vr(vL0,2)}")
    a.I(f"v_lshrrev_b32 v100, 4, v{vLn}")
    a.I("v_bfe_u32 v101, v100, 4, 1")
    a.I("v_lshlrev_b32 v101, 17, v101")
    a.I("v_and_b32 v102, 15, v100")
    a.I("v_lshl_add_u32 v101, v102, 4, v101")
    a.I("v_lshrrev_b32 v102, 5, v100")
    a.I("v_lshl_add_u32 v101, v102, 8, v101")
    a.I(f"s_mul_i32 s46, s{sB}, 12")
    a.I(f"s_lshl_b32 s47, s{sI}, 1")
    a.I("s_add_u32 s46, s46, s47")
    a.I("s_lshl_b32 s46, s46, 5")
    a.I(f"s_add_u32 s46, s46, s{sH}")
    a.I("s_lshl_b32 s46, s46, 12")
    a.I(f"s_lshl_b32 s47, s{sJ}, 11")
    a.I("s_add_u32 s46, s46, s47")
    a.I(f"s_cmp_eq_u32 s{sJ}, 1")
    a.I("s_cbranch_scc1 A_ep1")
    for j in range(2):
        if j == 1:
            a.L("A_ep1")
        keep, send = vO + 32 * j, vO + 32 * (1 - j)
        for k in range(8):
            a.I(f"ds_write_b128 v96, {vr(send+4*k,4)} offset:{1024*k}")
        a.I("s_waitcnt lgkmcnt(0)")
        a.I("s_barrier")
        a.I("ds_read_b64 v[104:105], v98")
        for k in range(8):
            a.I(f"ds_read_b128 {vr(vQ+4*k,4)}, v97 offset:{1024*k}")
        a.I("s_waitcnt lgkmcnt(8)")
        a.I(f"v_min_f32 v106, v104, v{vL0}")
        a.I(f"v_sub_f32 v107, v106, v{vL0}")
        a.I("v_sub_f32 v108, v106, v104")
        a.I("v_exp_f32 v107, v107")
        a.I("v_exp_f32 v108, v108")
        a.I(f"v_mul_f32 v109, v107, v{vL1}")
        a.I("v_fma_f32 v109, v108, v105, v109")
        a.I("v_rcp_f32 v109, v109")
        a.I("v_mul_f32 v107, v107, v109")
        a.I("v_mul_f32 v108, v108, v109")
        for k in range(32):
            a.I(f"v_mul_f32 v{keep+k}, v{keep+k}, v107")
        for k in range(8):
            a.I(f"s_waitcnt lgkmcnt({7-k})")
            for e in range(4):
                a.I(f"v_fma_f32 v{keep+4*k+e}, v{vQ+4*k+e}, v108, v{keep+4*k+e}")
        for c in range(4):
            for e in range(4):
                a.I(f"v_cvt_pk_bf16_f32 v{112+4*c+e}, v{keep+8*c+2*e}, v{keep+8*c+2*e+1}")
            a.I(f"buffer_store_dwordx4 {vr(112+4*c,4)}, v101, {sr(sO,4)}, s46 offen offset:{512*c}")
        if opt.get("stamps"):
            a.I("s_waitcnt vmcnt(0)")
        dump_stamps()
        a.I("s_endpgm")
    for tag in rare:
        a.L(f"A_rare{tag}")
        a.I(f"v_mov_b32 v{vP}, v{vMX}")
        a.I(f"v_permlane32_swap_b32 v{vMX}, v{vP}")
        a.I(f"v_max3_f32 v{vMX}, v{vMX}, v{vP}, v{vM}")
        a.I(f"v_sub_f32 v{vP}, v{vM}, v{vMX}")
        a.I(f"v_mul_f32 v{vP}, s{sC}, v{vP}")
        a.I(f"v_exp_f32 v{vP}, v{vP}")
        a.I(f"v_mov_b32 v{vM}, v{vMX}")
        a.I(f"v_mul_f32 v{vNB}, s{sC}, v{vMX}")
        a.I(f"v_sub_f32 v{vNB}, 0, v{vNB}")
        a.I(f"v_add_f32 v{vTHR}, s{sTC}, v{vMX}")
        a.I(f"v_mul_f32 v{vL0}, v{vL0}, v{vP}")
        a.I(f"v_mul_f32 v{vL1}, v{vL1}, v{vP}")
        for k in range(64):
            a.I(f"v_mul_f32 v{vO+k}, v{vO+k}, v{vP}")
        a.I(f"s_branch A_back{tag}")
    a.L("A_done")
    a.I("s_endpgm")


def gen_oproj(a, opt):
    NS = 4
    WREG = 20480
    vAcc, vOf, vWf = 0, 48, 96
    vOA, vWD, vWA = 112, 113, 114
    sO, sW, sOut = 16, 20, 24
    sWV, sRT, sCT = 28, 29, 30
    a.L("oproj_kernel")
    a.I("s_cmp_ge_u32 s2, 256")
    a.I("s_cbranch_scc1 B_done")
    a.I("s_load_dwordx4 s[4:7], s[0:1], 32")
    a.I("s_load_dwordx2 s[8:9], s[0:1], 56")
    a.I("v_lshrrev_b32 v120, 6, v0")
    a.I("v_and_b32 v121, 63, v0")
    a.I(f"v_readfirstlane_b32 s{sWV}, v120")
    a.I("s_bfe_u32 s10, s2, 0x20001")
    a.I("s_lshl_b32 s10, s10, 3")
    a.I("s_bfe_u32 s11, s2, 0x30003")
    a.I(f"s_add_u32 s{sRT}, s10, s11")
    a.I("s_and_b32 s10, s2, 1")
    a.I("s_lshl_b32 s10, s10, 2")
    a.I("s_lshr_b32 s11, s2, 6")
    a.I(f"s_add_u32 s{sCT}, s10, s11")
    a.I(f"v_lshlrev_b32 v{vOA}, 4, v121")
    a.I("v_lshrrev_b32 v122, 4, v121")
    a.I("v_lshlrev_b32 v123, 1, v122")
    a.I("v_and_b32 v124, 7, v121")
    a.I("v_xor_b32 v123, v123, v124")
    a.I("v_lshlrev_b32 v123, 4, v123")
    a.I("v_lshrrev_b32 v124, 3, v121")
    a.I(f"v_lshl_add_u32 v{vWD}, v124, 10, v123")
    a.I("v_bfe_u32 v123, v121, 2, 2")
    a.I("v_and_b32 v124, 1, v122")
    a.I("v_lshl_add_u32 v123, v124, 2, v123")
    a.I("v_lshrrev_b32 v125, 1, v123")
    a.I("v_lshrrev_b32 v124, 1, v122")
    a.I("v_lshl_add_u32 v123, v124, 4, v123")
    a.I("v_lshlrev_b32 v123, 7, v123")
    a.I("v_and_b32 v124, 3, v121")
    a.I("v_lshl_add_u32 v123, v124, 3, v123")
    a.I(f"s_mul_i32 s31, s{sWV}, {WREG}")
    a.I("v_add_u32 v123, s31, v123")
    for nt in range(4):
        a.I(f"v_xor_b32 v124, {nt}, v125")
        a.I(f"v_lshl_add_u32 v{vWA+nt}, v124, 5, v123")
    a.I("s_waitcnt lgkmcnt(0)")
    srd(a, sO, 8, 9, 12582912)
    srd(a, sW, 4, 5, 4194304)
    srd(a, sOut, 6, 7, 1572864)
    a.I(f"s_mul_i32 s32, s{sRT}, {3*32*4096}")
    a.I(f"s_lshl_b32 s10, s{sWV}, 14")
    a.I("s_add_u32 s32, s32, s10")
    a.I("s_add_u32 s33, s32, 131072")
    a.I("s_add_u32 s34, s32, 262144")
    a.I(f"s_lshl_b32 s35, s{sWV}, 19")
    a.I(f"s_lshl_b32 s10, s{sCT}, 7")
    a.I("s_add_u32 s35, s35, s10")

    def issue(k):
        sl = k % NS
        for pp in range(4):
            a.I(f"s_add_u32 m0, s31, {sl*4096 + pp*1024}")
            a.I(f"s_add_u32 s10, s35, {(32*k + 8*pp)*1024}")
            a.I(f"buffer_load_dwordx4 v{vWD}, {sr(sW,4)}, s10 offen lds")
        for r3 in range(3):
            if k % 4 == 0 and k > 0:
                a.I(f"s_add_u32 s{32+r3}, s{32+r3}, 4096")
            a.I(f"buffer_load_dwordx4 {vr(vOf+12*sl+4*r3,4)}, v{vOA}, {sr(sO,4)}, s{32+r3} offen offset:{1024*(k%4)}")
    for k in range(NS):
        issue(k)
    for k in range(16):
        sl = k % NS
        left = min(NS - 1, 15 - k)
        a.I(f"s_waitcnt vmcnt({7*left})")
        for nt in range(4):
            a.I(f"ds_read_b64_tr_b16 {vr(vWf+4*nt,2)}, v{vWA+nt} offset:{sl*4096}")
            a.I(f"ds_read_b64_tr_b16 {vr(vWf+4*nt+2,2)}, v{vWA+nt} offset:{sl*4096+1024}")
        for nt in range(4):
            a.I(f"s_waitcnt lgkmcnt({6-2*nt})")
            for r3 in range(3):
                acc = vr(vAcc + 4 * (3 * nt + r3), 4)
                cin = "0" if k == 0 else acc
                a.I(f"v_mfma_f32_16x16x32_bf16 {acc}, {vr(vWf+4*nt,4)}, {vr(vOf+12*sl+4*r3,4)}, {cin}")
        if k + NS < 16:
            issue(k + NS)
    a.I(f"v_add_u32 v120, s31, v{vOA}")
    for t in range(12):
        a.I(f"ds_write_b128 v120, {vr(vAcc+4*t,4)} offset:{1024*t}")
    a.I("s_waitcnt lgkmcnt(0)")
    a.I("s_barrier")
    a.I(f"s_cmp_ge_u32 s{sWV}, 6")
    a.I("s_cbranch_scc1 B_done")
    a.I(f"s_lshl_b32 s10, s{sWV}, 6")
    a.I("v_add_u32 v100, s10, v121")
    a.I("v_lshrrev_b32 v101, 3, v100")
    a.I("v_and_b32 v102, 7, v100")
    a.I("v_lshrrev_b32 v103, 1, v102")
    a.I("v_mul_u32_u24 v103, 3, v103")
    a.I("v_lshrrev_b32 v104, 4, v101")
    a.I("v_add_u32 v103, v103, v104")
    a.I("v_lshlrev_b32 v103, 10, v103")
    a.I("v_and_b32 v104, 1, v102")
    a.I("v_lshl_add_u32 v103, v104, 9, v103")
    a.I("v_and_b32 v104, 15, v101")
    a.I("v_lshl_add_u32 v103, v104, 4, v103")
    a.I(f"v_add_u32 v105, {3*WREG}, v103")
    a.I(f"v_add_u32 v106, {6*WREG}, v103")
    for w in range(8):
        base = [103, 105, 106][w // 3]
        off = (w % 3) * WREG
        a.I(f"ds_read_b128 {vr(8*w,4)}, v{base} offset:{off}")
        a.I(f"ds_read_b128 {vr(8*w+4,4)}, v{base} offset:{off+256}")
        if w == 6:
            a.I("s_waitcnt lgkmcnt(8)")
    a.I("v_lshlrev_b32 v101, 10, v101")
    a.I("v_lshl_add_u32 v101, v102, 4, v101")
    a.I(f"s_mul_i32 s10, s{sRT}, {48*1024}")
    a.I(f"s_lshl_b32 s11, s{sCT}, 7")
    a.I("s_add_u32 s10, s10, s11")
    for w in range(1, 8):
        a.I(f"s_waitcnt lgkmcnt({14-2*w})")
        for e in range(8):
            a.I(f"v_add_f32 v{e}, v{e}, v{8*w+e}")
    for e in range(4):
        a.I(f"v_cvt_pk_bf16_f32 v{64+e}, v{2*e}, v{2*e+1}")
    a.I(f"buffer_store_dwordx4 v[64:67], v101, {sr(sOut,4)}, s10 offen")
    a.L("B_done")
    a.I("s_endpgm")


HEADER = """; Kernarg layout for this problem (64 bytes, ptrs only, base s[0:1]):
; @launch kernel=attn_kernel grid=(256,1,1) block=(768,1,1) lds=163840
; @launch kernel=oproj_kernel grid=(256,1,1) block=(512,1,1) lds=163840
.amdgcn_target "amdgcn-amd-amdhsa--gfx950"
.text
"""

def kd(name, nv, ns):
    return f""".p2align 6
.amdhsa_kernel {name}
  .amdhsa_next_free_vgpr {nv}
  .amdhsa_next_free_sgpr {ns}
  .amdhsa_accum_offset {(nv+3)//4*4}
  .amdhsa_group_segment_fixed_size 0
  .amdhsa_kernarg_size 64
  .amdhsa_user_sgpr_count 2
  .amdhsa_user_sgpr_kernarg_segment_ptr 1
  .amdhsa_system_sgpr_workgroup_id_x 1
.end_amdhsa_kernel
"""

def build(opt):
    out = HEADER
    for name, fn in (("attn_kernel", gen_attn), ("oproj_kernel", gen_oproj)):
        a = Asm()
        fn(a, opt)
        n = a.pad_hazards()
        out += f".globl {name}\n.p2align 8\n.type {name},@function\n" + a.text()
    out += '.section .rodata,"a"\n' + kd("attn_kernel", 168, 102) + kd("oproj_kernel", 128, 48)
    return out

if __name__ == "__main__":
    opt = {}
    path = sys.argv[1]
    for x in sys.argv[2:]:
        k, _, v = x.partition("=")
        opt[k] = int(v) if v else 1
    open(path, "w").write(build(opt))
```

```python
import struct, sys, math
from asmlib import Asm, vr, sr

def f32(x):
    return "0x%08x" % struct.unpack("<I", struct.pack("<f", x))[0]

CSCALE = (128 ** -0.5) * math.log2(math.e)
HEAD = 16.0
MF = "v_mfma_f32_16x16x32_bf16"
KNAME = "standalone__gqa_block_cached__near_ridge_kernel"
FLAGS = 1 << 24
WPRE = 20 << 20
WSREC = WPRE + (4 << 20)
AREA = 20480
AMAP = [4, 0, 5, 1, 6, 2, 3, 7]
AMAPC = sum(v << (4 * i) for i, v in enumerate(AMAP))

KP, VP = 1088, 1056
KSL, VSL = 16 * KP, 16 * VP
KREG = 0
XA = 4 * KSL
VREG = XA + 24576
XBUF = {1: XA, 2: 17408, 0: 45056}
WBUF = {1: VREG + 3 * VSL, 2: VREG + 1 * VSL, 0: VREG + 2 * VSL}

pX, pK, pV, pWq, pWo, pOut, pDbg, pWs = 4, 6, 8, 10, 12, 14, 16, 18
sX, sW, sK, sV, sO, sWo = 20, 24, 28, 32, 36, 40
sWV, sB, sH, sRotC, sRotT, sT, sC, sBig = 44, 45, 50, 51, 52, 53, 54, 55
sKB, sCTO, sAREA, sROT, sRT, sWB = 51, 54, 55, 56, 57, 53
STB = 58

def srd(a, d, p, nrec, off=None):
    if off is None:
        a.I(f"s_mov_b32 s{d}, s{p}")
        a.I(f"s_and_b32 s{d+1}, s{p+1}, 0xffff")
    else:
        a.I(f"s_add_u32 s{d}, s{p}, {off}")
        a.I(f"s_addc_u32 s{d+1}, s{p+1}, 0")
        a.I(f"s_and_b32 s{d+1}, s{d+1}, 0xffff")
    a.I(f"s_mov_b32 s{d+2}, {nrec}")
    a.I(f"s_mov_b32 s{d+3}, 0x00020000")

class Stamps:
    def __init__(self, a, n):
        self.a, self.n = a, n
        self.map = None
    def __call__(self, k):
        if not self.n:
            return
        k = self.map.get(k) if self.map else k
        if k is None or isinstance(k, str):
            return
        assert k < self.n
        self.a.I(f"s_memrealtime s[{STB+4*k}:{STB+4*k+1}]")
        self.a.I(f"s_memtime s[{STB+4*k+2}:{STB+4*k+3}]")
        self.a.I("s_waitcnt lgkmcnt(0)")
    def dump(self, v):
        if not self.n:
            return
        a, n = self.a, self.n
        a.I("s_waitcnt vmcnt(0)")
        self(n - 1)
        a.I("s_lshl_b32 s46, s2, 4")
        a.I(f"s_add_u32 s46, s46, s{sWV}")
        a.I(f"s_mul_i32 s46, s46, {16*n}")
        a.I(f"s_add_u32 s46, s46, {1<<27}")
        a.I(f"s_mov_b32 s{sO+2}, 0x10000000")
        a.I(f"v_mov_b32 v{v+2}, 0")
        for k in range(2 * n):
            a.I(f"v_mov_b32 v{v}, s{STB+2*k}")
            a.I(f"v_mov_b32 v{v+1}, s{STB+1+2*k}")
            a.I(f"buffer_store_dwordx2 v[{v}:{v+1}], v{v+2}, {sr(sO,4)}, s46 offen offset:{8*k}")
            a.I("s_nop 1")

def gen(a, opt):
    NT = " nt"
    XP = " nt" if opt.get("xnt") else ""
    WOP = " nt" if opt.get("wont") else ""
    vO, vQ, vS, vP, vNM, vL, vONE, vPOOL = 0, 96, 144, 168, 192, 204, 216, 220
    vKA, vVA, vT = 244, 245, 246
    vLANE, vG, vL15 = 255, 254, 253
    O = lambda dt, q: vO + 12 * dt + 4 * q
    Q = lambda ks, q: vQ + 12 * ks + 4 * q
    S = lambda kt, q: vS + 12 * kt + 4 * q
    P = lambda par, q: vP + 12 * par + 4 * q
    stamp = Stamps(a, opt.get("stamps", 0))
    SM = opt.get("smode", 0)
    if SM == 1:
        stamp.map = {0: 0, 1: 1, 2: 2, "u1": 3, "a1": 4, "a2": 5, "a3": 6, "u28": 7, 3: 8, 6: 9, 10: 10}
    vACC, vWR, vOB, vTW = 0, 48, 192, 228
    vOA, vLA, vFL = 244, 245, 250

    a.L(KNAME)
    a.I("s_cmp_ge_u32 s2, 256")
    a.I("s_cbranch_scc1 A_done")
    stamp(0)
    a.I("s_load_dwordx16 s[4:19], s[0:1], 0")
    a.I("v_lshrrev_b32 v1, 6, v0")
    a.I(f"v_and_b32 v{vLANE}, 63, v0")
    a.I(f"v_readfirstlane_b32 s{sWV}, v1")
    a.I("s_and_b32 s46, s2, 1")
    a.I("s_lshl_b32 s46, s46, 2")
    a.I("s_bfe_u32 s47, s2, 0x20003")
    a.I(f"s_add_u32 s{sB}, s46, s47")
    a.I("s_bfe_u32 s46, s2, 0x20001")
    a.I("s_lshl_b32 s46, s46, 3")
    a.I("s_lshr_b32 s48, s2, 5")
    a.I(f"s_add_u32 s{sH}, s46, s48")
    if opt.get("rotc"):
        a.I("s_lshl_b32 s47, s47, 1")
        a.I(f"s_add_u32 s{sRotC}, s47, s48")
    else:
        a.I(f"s_mov_b32 s{sRotC}, 0")
    if opt.get("rott"):
        a.I(f"s_bfe_u32 s{sRotT}, s2, 0x40003")
    else:
        a.I(f"s_mov_b32 s{sRotT}, 0")
    a.I(f"v_lshrrev_b32 v{vG}, 4, v{vLANE}")
    a.I(f"v_and_b32 v{vL15}, 15, v{vLANE}")
    a.I(f"s_cmp_ge_u32 s{sWV}, 4")
    a.I("s_cbranch_scc1 A_loader")

    def p2_setup():
        a.I("s_bfe_u32 s46, s2, 0x20001")
        a.I("s_lshl_b32 s46, s46, 3")
        a.I("s_bfe_u32 s47, s2, 0x30003")
        a.I(f"s_add_u32 s{sRT}, s46, s47")
        a.I("s_and_b32 s46, s2, 1")
        a.I("s_lshl_b32 s46, s46, 2")
        a.I("s_lshr_b32 s48, s2, 6")
        a.I("s_add_u32 s46, s46, s48")
        a.I(f"s_lshl_b32 s{sCTO}, s46, 7")
        a.I("s_lshl_b32 s48, s48, 2")
        a.I(f"s_mul_i32 s47, s47, {opt.get('rotw', 18)}")
        a.I(f"s_add_u32 s{sROT}, s47, s48")
        a.I(f"s_lshl_b32 s46, s{sWV}, 4")
        a.I(f"s_add_u32 s{sKB}, s46, s{sROT}")
        a.I(f"s_lshl_b32 s46, s{sWV}, 2")
        a.I(f"s_lshr_b32 s46, {AMAPC:#x}, s46")
        a.I("s_and_b32 s46, s46, 15")
        a.I(f"s_mul_i32 s{sAREA}, s46, {AREA}")
        a.I(f"s_lshl_b32 s{sWB}, s{sCTO}, 12")
        a.I(f"s_add_u32 s{sWB}, s{sWB}, {WPRE}")
        a.I(f"v_lshlrev_b32 v{vOA}, 4, v{vLANE}")
        a.I(f"v_add_u32 v{vLA}, s{sAREA}, v{vOA}")
    def slab_off(kb_s, j, dst=47):
        a.I(f"s_add_u32 s{dst}, s{kb_s}, {j}")
        a.I(f"s_and_b32 s{dst}, s{dst}, 127")
        a.I(f"s_lshl_b32 s{dst}, s{dst}, 12")
        a.I(f"s_add_u32 s{dst}, s{dst}, s{sWB}")
    def slab_dma(j, slot):
        slab_off(sKB, j)
        a.I(f"s_add_u32 m0, s{sAREA}, {4096*slot}")
        for pp in range(4):
            a.I(f"buffer_load_dwordx4 v{vOA}, {sr(sO,4)}, s47 offen offset:{1024*pp} sc1 lds")
    def slab_load(j, dst):
        slab_off(sKB, j)
        for nt in range(4):
            a.I(f"buffer_load_dwordx4 {vr(dst+4*nt,4)}, v{vOA}, {sr(sO,4)}, s47 offen offset:{1024*nt} sc1")
    def slab_read(dst, slot):
        for nt in range(4):
            a.I(f"ds_read_b128 {vr(dst+4*nt,4)}, v{vLA} offset:{4096*slot + 1024*nt}")

    a.I(f"s_mov_b32 s{sC}, {f32(CSCALE)}")
    a.I(f"s_mov_b32 s{sBig}, 0x40000000")
    if opt.get("prio"):
        a.I(f"s_setprio {opt['prio']}")
    vXA, vWQ = 247, 249
    a.I(f"s_mul_i32 s46, s{sWV}, {48*128}")
    a.I(f"v_lshl_add_u32 v1, v{vL15}, 7, s46")
    a.I(f"v_lshrrev_b32 v2, 1, v{vL15}")
    a.I(f"v_xor_b32 v2, v2, v{vG}")
    a.I(f"v_lshl_add_u32 v{vXA}, v2, 4, v1")
    a.I("v_xor_b32 v2, 4, v2")
    a.I(f"v_lshl_add_u32 v{vXA+1}, v2, 4, v1")
    a.I(f"v_add_u32 v250, {XA}, v{vXA}")
    a.I(f"v_add_u32 v251, {XA}, v{vXA+1}")
    a.I(f"v_bfe_u32 v1, v{vLANE}, 2, 3")
    a.I(f"v_mul_u32_u24 v1, {VP}, v1")
    a.I(f"v_and_b32 v2, 3, v{vLANE}")
    a.I("v_lshl_add_u32 v1, v2, 3, v1")
    a.I(f"v_add_u32 v1, {VREG}, v1")
    a.I(f"v_lshrrev_b32 v2, 5, v{vLANE}")
    a.I(f"v_lshl_add_u32 v{vVA}, v2, 8, v1")
    a.I(f"v_lshl_add_u32 v{vWQ}, v2, 9, v1")
    a.I(f"v_lshrrev_b32 v1, 2, v{vL15}")
    a.I(f"v_mul_u32_u24 v1, {KP}, v1")
    a.I(f"v_and_b32 v3, 3, v{vL15}")
    a.I("v_lshl_add_u32 v1, v3, 8, v1")
    a.I(f"v_and_b32 v4, 1, v{vG}")
    a.I("v_lshl_or_b32 v4, v4, 1, v2")
    a.I("v_xor_b32 v4, v4, v3")
    a.I(f"v_lshl_add_u32 v{vKA}, v4, 4, v1")
    for k in range(4):
        a.I(f"v_mov_b32 v{vONE+k}, 0x3f803f80")
    a.I("s_waitcnt lgkmcnt(0)")
    srd(a, sO, pWs, WSREC)
    SLOT = [0, 1, 2, 3, 4, 0, 1, 2, 3, 4, 0, 1, 2, 3, 4, 5]
    F = lambda f: vPOOL + 4 * SLOT[f]
    def koff(u, kt, ks):
        return ((u >> 1) & 3) * KSL + (2 * (u & 1) + kt) * 4 * KP + 64 * ks
    def voff(u, dt):
        return ((u >> 1) & 3) * VSL + (u & 1) * 8 * VP + 32 * dt
    def kread(dst, u, kt, ks):
        return [f"ds_read_b128 {vr(dst,4)}, v{vKA} offset:{koff(u,kt,ks)}"]
    def vread(dst, u, dt):
        return [f"ds_read_b64_tr_b16 {vr(dst,2)}, v{vVA} offset:{voff(u,dt)}",
                f"ds_read_b64_tr_b16 {vr(dst+2,2)}, v{vVA} offset:{voff(u,dt)+512}"]
    EXP = lambda kt, i: f"v_exp_f32 v{S(kt,0)+i}, v{S(kt,0)+i}"
    CVT = lambda par, kt, j: f"v_cvt_pk_bf16_f32 v{P(par,j>>1)+2*kt+(j&1)}, v{S(kt,0)+2*j}, v{S(kt,0)+2*j+1}"

    def plain_qk(u, t0, t1):
        for kt in range(2):
            for ks in range(4):
                t = t0 if ks % 2 == 0 else t1
                for x in kread(t, u, kt, ks):
                    a.I(x)
                a.I("s_waitcnt lgkmcnt(0)")
                for q in range(3):
                    cin = vr(vNM + 4 * q, 4) if ks == 0 else vr(S(kt, q), 4)
                    a.I(f"{MF} {vr(S(kt,q),4)}, {vr(t,4)}, {vr(Q(ks,q),4)}, {cin}")

    def refresh(u, first, tmp):
        par = u & 1
        for q in range(3):
            m = tmp + 2 * q
            s0, s1 = S(0, q), S(1, q)
            a.I(f"v_max3_f32 v{m}, v{s0}, v{s0+1}, v{s0+2}")
            a.I(f"v_max3_f32 v{m}, v{m}, v{s0+3}, v{s1}")
            a.I(f"v_max3_f32 v{m}, v{m}, v{s1+1}, v{s1+2}")
            a.I(f"v_max_f32 v{m}, v{m}, v{s1+3}")
        for sw in ("v_permlane16_swap_b32", "v_permlane32_swap_b32"):
            for q in range(3):
                a.I(f"v_mov_b32 v{tmp+2*q+1}, v{tmp+2*q}")
            for q in range(3):
                a.I(f"{sw} v{tmp+2*q}, v{tmp+2*q+1}")
            for q in range(3):
                a.I(f"v_max_f32 v{tmp+2*q}, v{tmp+2*q}, v{tmp+2*q+1}")
        for q in range(3):
            m = tmp + 2 * q
            a.I(f"v_add_f32 v{m}, {f32(HEAD)}, v{m}")
            if not first:
                a.I(f"v_max_f32 v{m}, 0, v{m}")
                a.I(f"v_exp_f32 v{m+1}, -v{m}")
        for q in range(3):
            m = tmp + 2 * q
            for e in range(4):
                a.I(f"v_sub_f32 v{vNM+4*q+e}, {'0' if first else 'v%d' % (vNM+4*q+e)}, v{m}")
            for kt in range(2):
                for e in range(4):
                    a.I(f"v_sub_f32 v{S(kt,q)+e}, v{S(kt,q)+e}, v{m}")
        for kt in range(2):
            for i in range(12):
                a.I(EXP(kt, i))
        for kt in range(2):
            for j in range(6):
                a.I(CVT(par, kt, j))
        if not first:
            for q in range(3):
                f = tmp + 2 * q + 1
                for e in range(4):
                    a.I(f"v_mul_f32 v{vL+4*q+e}, v{vL+4*q+e}, v{f}")
                for dt in range(8):
                    for e in range(4):
                        a.I(f"v_mul_f32 v{O(dt,q)+e}, v{O(dt,q)+e}, v{f}")

    XF = lambda c, kk, q: (96 if (c & 1) == 0 else 144) + 12 * kk + 4 * q
    NW = 10
    WPOOL = [168 + 4 * i for i in range(6)] + [120 + 4 * i for i in range(6)]
    WPOOL = [168, 172, 176, 180, 184, 188, 192, 196, 200, 204, 208, 212]
    WF = lambda n: WPOOL[n % 12]
    def xreads(c):
        r = []
        for kk in range(2):
            for q in range(3):
                if c % 3 == 1:
                    r.append((("x", c), f"ds_read_b128 {vr(XF(c,kk,q),4)}, v{250+kk} offset:{2048*q}"))
                else:
                    r.append((("x", c), f"ds_read_b128 {vr(XF(c,kk,q),4)}, v{vXA+kk} offset:{XBUF[c%3] + 2048*q}"))
        return r
    def wreads(c, dt):
        r = []
        for kk in range(2):
            n = 16 * c + 2 * dt + kk
            o = WBUF[c % 3] - VREG + 8 * kk * VP + 32 * dt
            r.append((("w", c, dt), f"ds_read_b64_tr_b16 {vr(WF(n),2)}, v{vWQ} offset:{o}"))
            r.append((("w", c, dt), f"ds_read_b64_tr_b16 {vr(WF(n)+2,2)}, v{vWQ} offset:{o+256}"))
        return r
    def pack(ks):
        r = []
        for q in range(3):
            for z in range(2):
                o = O(2 * ks + z, q)
                for e in range(4):
                    r.append(f"v_mul_f32 v{o+e}, s{sC}, v{o+e}")
            for z in range(2):
                o = O(2 * ks + z, q)
                r.append(f"v_cvt_pk_bf16_f32 v{Q(ks,q)+2*z}, v{o}, v{o+1}")
                r.append(f"v_cvt_pk_bf16_f32 v{Q(ks,q)+2*z+1}, v{o+2}, v{o+3}")
        for q in range(3):
            r.append(f"v_permlane16_swap_b32 v{Q(ks,q)}, v{Q(ks,q)+2}")
            r.append(f"v_permlane16_swap_b32 v{Q(ks,q)+1}, v{Q(ks,q)+3}")
        return r
    lq = []
    def emit(x):
        if isinstance(x, tuple):
            a.I(x[1]); lq.append(x[0])
        else:
            a.I(x)
    def lwait(tags):
        idx = [i for i, t in enumerate(lq) if t in tags]
        if idx:
            del lq[:idx[-1] + 1]
            a.I(f"s_waitcnt lgkmcnt({min(len(lq), 15)})")
    def spread(mf, fill):
        n = len(mf)
        for i, m in enumerate(mf):
            a.I(m)
            for x in fill[len(fill) * i // n: len(fill) * (i + 1) // n]:
                emit(x)
    K0 = [vPOOL + 4 * i for i in range(6)] + [O(0, 0), O(0, 1)]
    a.I("s_barrier")
    stamp(1)
    for x in xreads(0)[:3] + wreads(0, 0)[:2] + xreads(0)[3:] + wreads(0, 0)[2:] + wreads(0, 1):
        emit(x)
    pend = []
    for c in range(8):
        rest = [x for dt in range(2, 8) for x in wreads(c, dt)]
        for dt in range(8):
            fill = []
            if dt < 5:
                fill += rest[24 * dt // 5: 24 * (dt + 1) // 5]
            if dt == 6:
                a.I("s_waitcnt lgkmcnt(0)")
                lq.clear()
                a.I("s_barrier")
                if c < 7:
                    nx = xreads(c + 1) + wreads(c + 1, 0) + wreads(c + 1, 1)
                else:
                    stamp(2)
                    nx = [(("k", kt, ks), kread(K0[2 * ks + kt], 0, kt, ks)[0]) for ks in range(4) for kt in range(2)]
            if dt >= 6:
                h = (len(nx) + 1) // 2
                fill += nx[:h] if dt == 6 else nx[h:]
            if c == 7:
                if dt >= 2 and dt % 2 == 0:
                    pend = pack(dt // 2 - 1)
                    take = pend[:len(pend) // 2]; pend = pend[len(pend) // 2:]
                else:
                    take = pend; pend = []
                merged = []
                m = max(len(fill), len(take), 1)
                for i in range(m):
                    merged += fill[len(fill) * i // m: len(fill) * (i + 1) // m]
                    merged += take[len(take) * i // m: len(take) * (i + 1) // m]
                fill = merged
            lwait({("x", c), ("w", c, dt)})
            mf = []
            for q in range(3):
                for kk in range(2):
                    cin = "0" if (c == 0 and kk == 0) else vr(O(dt, q), 4)
                    mf.append(f"{MF} {vr(O(dt,q),4)}, {vr(WF(16*c+2*dt+kk),4)}, {vr(XF(c,kk,q),4)}, {cin}")
            spread(mf, fill)
    last_pack = pack(3)
    for ks in range(4):
        lwait({("k", 0, ks), ("k", 1, ks)})
        mf = []
        for kt in range(2):
            for q in range(3):
                cin = "0" if ks == 0 else vr(S(kt, q), 4)
                mf.append(f"{MF} {vr(S(kt,q),4)}, {vr(K0[2*ks+kt],4)}, {vr(Q(ks,q),4)}, {cin}")
        fill = last_pack[14 * ks: 14 * ks + 14] if ks < 3 else [kread(F(f), 1, 0, f)[0] for f in range(4)]
        spread(mf, fill)
    refresh(0, True, P(1, 0))
    a.I(f"s_mov_b32 s{sT}, 0")

    rare = []
    def body(u, tag, last=False, first=False):
        par, np_ = u & 1, (u + 1) & 1
        G = [[] for _ in range(17)]
        if not last:
            for f in range(4):
                G[f] += kread(F(4 + f), u + 1, 1, f)
        for f in range(4):
            G[4 + f] += vread(F(8 + f), u, f)
            G[9 + f] += vread(F(12 + f), u, 4 + f)
        if not last:
            if u % 2 == 0:
                G[13].append("s_barrier")
            for f in range(4):
                G[13 + f] += kread(F(f), u + 2, 0, f)
        if not first:
            G[0] += [EXP(1, 6), EXP(1, 7), CVT(par, 1, 0)]
            G[1] += [EXP(1, 8), EXP(1, 9), CVT(par, 1, 1)]
            G[2] += [EXP(1, 10), EXP(1, 11), CVT(par, 1, 2)]
            G[3] += [CVT(par, 1, 3), CVT(par, 1, 4), CVT(par, 1, 5)]
            p0 = P(par, 0)
            G[3] += [f"v_or3_b32 v{vT}, v{p0}, v{p0+1}, v{p0+4}"]
            G[4] += [f"v_or3_b32 v{vT}, v{vT}, v{p0+5}, v{p0+8}", f"v_or3_b32 v{vT}, v{vT}, v{p0+9}, v{p0+2}",
                     f"v_or3_b32 v{vT}, v{vT}, v{p0+3}, v{p0+6}"]
            G[5] += [f"v_or3_b32 v{vT}, v{vT}, v{p0+7}, v{p0+10}"]
            G[6] += [f"v_or_b32 v{vT}, v{vT}, v{p0+11}"]
            G[7] += [f"v_lshl_or_b32 v{vT}, v{vT}, 16, v{vT}", f"v_cmp_le_u32 vcc, s{sBig}, v{vT}"]
        early = []
        if not last:
            early = [EXP(0, 0), EXP(0, 1)]
            G[5] += [early[0]]
            G[6] += [early[1]]
            G[8] += [EXP(0, 2), EXP(0, 3), EXP(0, 4)]
            G[9] += [EXP(0, 5), CVT(np_, 0, 0)]
            G[10] += [EXP(0, 6), CVT(np_, 0, 1)]
            G[11] += [EXP(0, 7), CVT(np_, 0, 2)]
            G[12] += [EXP(0, 8), CVT(np_, 0, 3)]
            G[13] += [EXP(0, 9), EXP(0, 10)]
            G[14] += [EXP(0, 11), EXP(1, 0), CVT(np_, 0, 4)]
            G[15] += [EXP(1, 1), EXP(1, 2), CVT(np_, 0, 5)]
            G[16] += [EXP(1, 3), EXP(1, 4), EXP(1, 5)]
        out = [f for f in range(4)] if not last else [-1] * 4
        frag_of = lambda g: g if g < 8 else (None if g == 8 else g - 1)
        def reads_frag(g):
            if g < 8: return 4 + g
            if g == 8: return None
            if g < 13: return g + 3
            return 16 + (g - 13)
        if last:
            seq = [x for g in range(8) for x in G[g] if x.startswith("ds_")]
            for i, x in enumerate(seq):
                a.I(x)
                out.append(8 + i // 2)
            for g in range(8):
                for x in G[g]:
                    if not x.startswith("ds_"):
                        a.I(x)
            a.I(f"s_cbranch_vccnz A_rare{tag}")
            a.L(f"A_back{tag}")
        for g in range(8 if last else 0, 17):
            fr = frag_of(g)
            if fr is not None and fr in out:
                upto = fr + 1 if (fr % 2 == 0 and (fr + 1) in out) else fr
                idx = max(i for i, z in enumerate(out) if z == upto)
                out = out[idx + 1:]
                a.I(f"s_waitcnt lgkmcnt({len(out)})")
            fill = G[g]
            cost = lambda x: 8 if x.startswith("v_exp") else 4
            tot = sum(cost(x) for x in fill)
            gaps = [[], [], []]
            acc_, gi = 0, 0
            for x in fill:
                while gi < 2 and acc_ + cost(x) / 2 > tot * (gi + 1) / 3:
                    gi += 1
                gaps[gi].append(x)
                acc_ += cost(x)
            for q in range(3):
                if g < 8:
                    kt, ks = g >> 2, g & 3
                    cin = vr(vNM + 4 * q, 4) if ks == 0 else vr(S(kt, q), 4)
                    a.I(f"{MF} {vr(S(kt,q),4)}, {vr(F(g),4)}, {vr(Q(ks,q),4)}, {cin}")
                elif g == 8:
                    a.I(f"{MF} {vr(vL+4*q,4)}, {vr(vONE,4)}, {vr(P(par,q),4)}, {'0' if first else vr(vL+4*q,4)}")
                else:
                    dt = g - 9
                    a.I(f"{MF} {vr(O(dt,q),4)}, {vr(F(8+dt),4)}, {vr(P(par,q),4)}, {'0' if first else vr(O(dt,q),4)}")
                for x in gaps[q]:
                    a.I(x)
                    if x.startswith("ds_"):
                        out.append(reads_frag(g))
            if g == 7 and not first:
                a.I(f"s_cbranch_vccnz A_rare{tag}")
                a.L(f"A_back{tag}")
        if not first:
            rare.append((tag, u, last, early))

    body(0, "F", first=True)
    if SM == 1:
        a.I("s_waitcnt lgkmcnt(0)")
        stamp("u1")
    a.I("s_branch A_loop1")
    a.L("A_loop")
    body(0, "0")
    a.L("A_loop1")
    for u in range(1, 7):
        body(u, str(u))
        if SM == 1 and u == 3:
            a.I("s_waitcnt lgkmcnt(0)")
            stamp("u28")
    a.I(f"s_add_u32 s{sT}, s{sT}, 1")
    a.I(f"s_cmp_eq_u32 s{sT}, 4")
    a.I("s_cbranch_scc1 A_last")
    body(7, "7")
    if SM == 1:
        for k in range(1, 4):
            a.I(f"s_cmp_lg_u32 s{sT}, {k}")
            a.I(f"s_cbranch_scc1 A_st{k}")
            a.I("s_waitcnt lgkmcnt(0)")
            stamp(f"a{k}")
            a.L(f"A_st{k}")
    a.I("s_branch A_loop")
    a.L("A_last")
    body(7, "L", last=True)
    a.I("s_barrier")
    stamp(3)
    a.I(f"v_lshlrev_b32 v247, 4, v{vLANE}")
    a.I(f"s_mul_i32 s46, s{sB}, 12")
    a.I(f"s_mul_i32 s47, s{sWV}, 3")
    a.I("s_add_u32 s46, s46, s47")
    a.I("s_lshl_b32 s46, s46, 5")
    a.I(f"s_add_u32 s46, s46, s{sH}")
    a.I("s_lshl_b32 s46, s46, 12")
    for q in range(3):
        a.I(f"v_rcp_f32 v{vNM+q}, v{vL+4*q}")
    for q in range(3):
        for s in range(4):
            d = vS + 4 * ((4 * q + s) % 12)
            for z in range(2):
                o = O(2 * s + z, q)
                for e in range(4):
                    a.I(f"v_mul_f32 v{o+e}, v{o+e}, v{vNM+q}")
                a.I(f"v_cvt_pk_bf16_f32 v{d+2*z}, v{o}, v{o+1}")
                a.I(f"v_cvt_pk_bf16_f32 v{d+2*z+1}, v{o+2}, v{o+3}")
            a.I(f"buffer_store_dwordx4 {vr(d,4)}, v247, {sr(sO,4)}, s46 offen offset:{1024*s} sc1")
        if q < 2:
            a.I("s_add_u32 s46, s46, 131072")
    stamp(4)
    p2_setup()
    a.I(f"s_lshl_b32 s46, s{sB}, 2")
    a.I(f"s_add_u32 s46, s46, s{sWV}")
    a.I("s_lshl_b32 s46, s46, 7")
    a.I(f"s_lshl_b32 s47, s{sH}, 2")
    a.I("s_add_u32 s46, s46, s47")
    a.I(f"s_add_u32 s46, s46, {FLAGS}")
    a.I("v_mov_b32 v0, 0")
    a.I("v_mov_b32 v1, 1")
    a.I("s_waitcnt vmcnt(0)")
    a.I("s_mov_b64 exec, 1")
    a.I(f"buffer_store_dword v1, v0, {sr(sO,4)}, s46 offen sc1")
    a.I("s_mov_b64 exec, -1")
    stamp(5)
    for j in range(9):
        slab_load(j, vWR + 16 * j)
    a.I("s_barrier")

    a.L("A_p2")
    a.I(f"s_bfe_u32 s46, s{sKB}, 0x50002")
    a.I(f"v_and_b32 v0, 31, v{vLANE}")
    a.I("v_subrev_u32 v1, s46, v0")
    a.I("v_and_b32 v1, 31, v1")
    a.I("v_cmp_gt_u32 s[48:49], 5, v1")
    a.I(f"v_lshlrev_b32 v{vFL}, 2, v0")
    a.I(f"s_lshl_b32 s46, s{sRT}, 7")
    a.I(f"s_add_u32 s46, s46, {FLAGS}")
    a.I("s_mov_b32 s3, 0")
    a.L("A_poll")
    a.I(f"buffer_load_dword v0, v{vFL}, {sr(sO,4)}, s46 offen sc1")
    a.I("s_add_u32 s3, s3, 1")
    a.I("s_waitcnt vmcnt(0)")
    a.I("v_cmp_ne_u32 vcc, 1, v0")
    a.I("s_and_b64 vcc, vcc, s[48:49]")
    a.I("s_cbranch_vccz A_go")
    a.I("s_sleep 2")
    a.I("s_cmp_lt_u32 s3, 0x100000")
    a.I("s_cbranch_scc1 A_poll")
    a.L("A_go")
    stamp(6)
    a.I(f"s_mul_i32 s3, s{sRT}, {3*131072}")
    order = list(range(16))
    lslot = {9: 0, 10: 1, 11: 2, 12: 3, 13: 4}
    free = [vOB, vOB + 12, vOB + 24]
    obuf = {}
    vm = []
    nxt = [0]
    def oload():
        i = nxt[0]
        if i >= 16 or not free:
            return False
        j = order[i]
        b = free.pop(0)
        obuf[j] = b
        a.I(f"s_add_u32 s46, s{sKB}, {j}")
        a.I("s_and_b32 s46, s46, 127")
        a.I("s_lshl_b32 s46, s46, 10")
        a.I("s_add_u32 s46, s46, s3")
        for r3 in range(3):
            if r3:
                a.I("s_add_u32 s46, s46, 131072")
            a.I(f"buffer_load_dwordx4 {vr(b+4*r3,4)}, v{vOA}, {sr(sO,4)}, s46 offen sc1")
            vm.append(("o", j))
        nxt[0] += 1
        return True
    def wait_for(tag):
        idx = [i for i, t in enumerate(vm) if t == tag]
        if not idx:
            return
        del vm[:idx[-1] + 1]
        a.I(f"s_waitcnt vmcnt({len(vm)})")
    while oload():
        pass
    MAXD = opt.get("odepth", 5)
    wreg = {j: vWR + 16 * j for j in range(9)}
    wreg[9] = vTW
    slab_read(vTW, lslot[9])
    for i, j in enumerate(order):
        if j == 8 or (j in lslot and j + 1 in lslot):
            pass
        wait_for(("w", j))
        wait_for(("o", j))
        nxt_lds = j in lslot and (j + 1) in lslot
        if nxt_lds:
            slab_read(wreg[j + 1], lslot[j + 1])
        if j in lslot:
            a.I(f"s_waitcnt lgkmcnt({4 if nxt_lds else 0})")
        for nt in range(4):
            for r3 in range(3):
                acc = vr(vACC + 4 * (3 * nt + r3), 4)
                cin = "0" if i == 0 else acc
                a.I(f"{MF} {acc}, {vr(wreg[j]+4*nt,4)}, {vr(obuf[j]+4*r3,4)}, {cin}")
        free.append(obuf[j])
        if j in (0, 1):
            wreg[14 + j] = wreg[j]
            slab_load(14 + j, wreg[j])
            vm.extend([("w", 14 + j)] * 4)
        elif j == 2:
            wreg[10] = wreg[12] = wreg[j]
            wreg[11] = wreg[13] = vTW
        elif j < 9:
            free.append(wreg[j])
        while nxt[0] - (i + 1) < MAXD and oload():
            pass
        if i == 7:
            stamp(7)
    stamp(8)
    for t in range(12):
        a.I(f"ds_write_b128 v{vLA}, {vr(vACC+4*t,4)} offset:{1024*t}")
    srd(a, sX, pOut, 1572864)
    a.I(f"s_lshl_b32 s46, s{sWV}, 6")
    a.I(f"v_add_u32 v100, s46, v{vLANE}")
    a.I("v_lshrrev_b32 v101, 3, v100")
    a.I("v_and_b32 v102, 7, v100")
    a.I("v_lshrrev_b32 v103, 1, v102")
    a.I("v_mul_u32_u24 v103, 3, v103")
    a.I("v_lshrrev_b32 v104, 4, v101")
    a.I("v_add_u32 v103, v103, v104")
    a.I("v_lshlrev_b32 v103, 10, v103")
    a.I("v_and_b32 v104, 1, v102")
    a.I("v_lshl_add_u32 v103, v104, 9, v103")
    a.I("v_and_b32 v104, 15, v101")
    a.I("v_lshl_add_u32 v103, v104, 4, v103")
    a.I(f"v_add_u32 v105, {3*AREA}, v103")
    a.I(f"v_add_u32 v106, {6*AREA}, v103")
    a.I("v_lshlrev_b32 v101, 10, v101")
    a.I("v_lshl_add_u32 v101, v102, 4, v101")
    a.I(f"s_mul_i32 s46, s{sRT}, {48*1024}")
    a.I(f"s_add_u32 s46, s46, s{sCTO}")
    a.I("s_waitcnt lgkmcnt(0)")
    a.I("s_barrier")
    stamp(9)
    a.I(f"s_cmp_ge_u32 s{sWV}, 6")
    a.I("s_cbranch_scc1 A_fin")
    for w in range(8):
        base = [103, 105, 106][w // 3]
        off = (w % 3) * AREA
        a.I(f"ds_read_b128 {vr(8*w,4)}, v{base} offset:{off}")
        a.I(f"ds_read_b128 {vr(8*w+4,4)}, v{base} offset:{off+256}")
        if w == 6:
            a.I("s_waitcnt lgkmcnt(8)")
    for w in range(1, 8):
        a.I(f"s_waitcnt lgkmcnt({14-2*w})")
        for e in range(8):
            a.I(f"v_add_f32 v{e}, v{e}, v{8*w+e}")
    for e in range(4):
        a.I(f"v_cvt_pk_bf16_f32 v{64+e}, v{2*e}, v{2*e+1}")
    a.I(f"buffer_store_dwordx4 v[64:67], v101, {sr(sX,4)}, s46 offen")
    a.L("A_fin")
    stamp.dump(108)
    a.I("s_endpgm")

    a.L("A_loader")
    vXD, vWqD, vKD, vVD = 10, 11, 12, 13
    a.I("s_waitcnt lgkmcnt(0)")
    def kv_setup():
        a.I(f"s_lshl_b32 s46, s{sB}, 5")
        a.I(f"s_add_u32 s46, s46, s{sH}")
        a.I("s_lshl_b32 s46, s46, 18")
        srd(a, sK, pK, 262144, "s46")
        srd(a, sV, pV, 262144, "s46")
        a.I(f"v_xor_b32 v1, v{vL15}, v{vG}")
        a.I("v_lshlrev_b32 v1, 4, v1")
        a.I(f"v_lshl_add_u32 v{vKD}, v{vG}, 8, v1")
        a.I(f"v_lshlrev_b32 v1, 4, v{vL15}")
        a.I(f"v_lshl_add_u32 v{vVD}, v{vG}, 11, v1")
    a.I(f"s_cmp_ge_u32 s{sWV}, 6")
    a.I("s_cbranch_scc1 A_kv")
    a.I(f"s_mul_i32 s46, s{sB}, 196608")
    srd(a, sX, pX, 196608, "s46")
    a.I(f"s_lshl_b32 s46, s{sH}, 8")
    a.I("s_sub_u32 s47, 4194304, s46")
    srd(a, sW, pWq, "s47", "s46")
    a.I(f"s_and_b32 s3, s{sWV}, 1")
    a.I("s_lshl_b32 s46, s3, 2")
    a.I(f"v_add_u32 v1, s46, v{vG}")
    a.I(f"v_and_b32 v2, 7, v{vLANE}")
    a.I("v_xor_b32 v1, v1, v2")
    a.I("v_lshlrev_b32 v1, 4, v1")
    a.I(f"v_lshrrev_b32 v2, 3, v{vLANE}")
    a.I("v_lshl_add_u32 v1, v2, 10, v1")
    a.I("s_lshl_b32 s46, s3, 13")
    a.I(f"v_add_u32 v{vXD}, s46, v1")
    a.I(f"v_lshrrev_b32 v1, 1, v{vG}")
    a.I(f"v_and_b32 v2, 1, v{vG}")
    a.I("v_lshlrev_b32 v1, 17, v1")
    a.I("v_lshl_add_u32 v1, v2, 15, v1")
    a.I(f"v_lshl_add_u32 v1, v{vL15}, 4, v1")
    a.I("s_lshl_b32 s46, s3, 18")
    a.I(f"v_add_u32 v{vWqD}, s46, v1")
    a.I("s_lshl_b32 s54, s3, 10")
    a.I(f"s_mul_i32 s55, s3, {8*VP}")
    def issue_chunk(c, hook):
        a.I(f"s_add_u32 s46, s{sRotC}, {c}")
        a.I("s_and_b32 s46, s46, 7")
        a.I("s_lshl_b32 s47, s46, 7")
        a.I("s_lshl_b32 s48, s46, 19")
        order = [("w", 0), ("x", 0), ("x", 1), ("w", 1), ("x", 2), ("w", 2), ("x", 3), ("x", 4), ("w", 3), ("x", 5),
                 ("w", 4), ("x", 6), ("x", 7), ("w", 5), ("x", 8), ("w", 6), ("x", 9), ("x", 10), ("w", 7), ("x", 11)]
        for i, (kind, k) in enumerate(order):
            hook(i)
            if kind == "x":
                a.I(f"s_add_u32 m0, s54, {XBUF[c%3] + 2048*k}")
                a.I(f"s_add_u32 s49, s47, {16384*k}")
                a.I(f"buffer_load_dwordx4 v{vXD}, {sr(sX,4)}, s49 offen{XP} lds")
            else:
                a.I(f"s_add_u32 m0, s55, {WBUF[c%3] + VP*k}")
                a.I(f"s_add_u32 s49, s48, {(8*(k>>2) + (k&3))*8192}")
                a.I(f"buffer_load_dwordx4 v{vWqD}, {sr(sW,4)}, s49 offen{XP} lds")
    W = opt.get("win", 20)
    nb = [0]
    for c in range(8):
        def hook(i, c=c):
            n = 20 * c + i
            while nb[0] < c - 1:
                a.I(f"s_waitcnt vmcnt({max(0, min(63, n - 20*(nb[0]+1)))})")
                a.I("s_barrier")
                nb[0] += 1
            if n >= W:
                a.I(f"s_waitcnt vmcnt({W-1})")
                while 20 * (nb[0] + 1) <= n - (W - 1):
                    a.I("s_barrier")
                    nb[0] += 1
        issue_chunk(c, hook)
    while nb[0] < 8:
        a.I(f"s_waitcnt vmcnt({160 - 20*(nb[0]+1)})")
        a.I("s_barrier")
        nb[0] += 1
    kv_setup()
    srd(a, sWo, pWo, 4194304)
    srd(a, sO, pWs, WSREC)
    a.I(f"v_lshlrev_b32 v1, 1, v{vG}")
    a.I(f"v_and_b32 v2, 7, v{vLANE}")
    a.I("v_xor_b32 v1, v1, v2")
    a.I("v_lshlrev_b32 v1, 4, v1")
    a.I(f"v_lshrrev_b32 v2, 3, v{vLANE}")
    a.I("v_lshl_add_u32 v14, v2, 10, v1")
    a.I(f"v_lshrrev_b32 v1, 2, v{vLANE}")
    a.I("v_lshlrev_b32 v1, 7, v1")
    a.I(f"v_and_b32 v2, 3, v{vLANE}")
    a.I("v_lshl_add_u32 v1, v2, 3, v1")
    a.I("s_lshl_b32 s54, s3, 13")
    a.I(f"s_add_u32 s54, s54, {XA}")
    a.I("v_add_u32 v1, s54, v1")
    a.I(f"v_bfe_u32 v3, v{vLANE}, 3, 2")
    for nt in range(4):
        a.I(f"v_xor_b32 v2, {nt}, v3")
        a.I(f"v_lshl_add_u32 v{16+nt}, v2, 5, v1")
    a.I(f"v_lshlrev_b32 v15, 4, v{vLANE}")
    a.I("s_and_b32 s46, s2, 1")
    a.I("s_lshl_b32 s46, s46, 1")
    a.I("s_add_u32 s46, s46, s3")
    a.I("s_lshr_b32 s48, s2, 1")
    a.I("s_lshl_b32 s47, s48, 15")
    a.I("s_lshl_b32 s55, s46, 8")
    a.I("s_add_u32 s47, s47, s55")
    a.I("s_lshl_b32 s55, s46, 20")
    a.I("s_lshl_b32 s48, s48, 12")
    a.I("s_add_u32 s55, s55, s48")
    a.I(f"s_add_u32 s55, s55, {WPRE}")
    a.I("s_barrier")
    for z in range(2):
        for pp in range(4):
            a.I(f"s_add_u32 m0, s54, {4096*z + 1024*pp}")
            a.I(f"s_add_u32 s49, s47, {8192*pp + 128*z}")
            a.I(f"buffer_load_dwordx4 v14, {sr(sWo,4)}, s49 offen{WOP} lds")
    a.I(f"s_lshl_b32 s46, s{sB}, 1")
    a.I("s_add_u32 s46, s46, s3")
    a.I("s_lshl_b32 s46, s46, 8")
    a.I(f"s_lshl_b32 s49, s{sH}, 2")
    a.I("s_add_u32 s46, s46, s49")
    a.I(f"s_add_u32 s46, s46, {FLAGS}")
    a.I(f"v_lshlrev_b32 v1, 7, v{vLANE}")
    a.I("v_mov_b32 v2, 0")
    a.I("s_mov_b64 exec, 3")
    a.I(f"buffer_store_dword v2, v1, {sr(sO,4)}, s46 offen sc1")
    a.I("s_mov_b64 exec, -1")
    a.I("s_barrier")
    a.I("s_waitcnt vmcnt(0)")
    for z in range(2):
        for nt in range(4):
            d = 20 + 16 * z + 4 * nt
            a.I(f"ds_read_b64_tr_b16 {vr(d,2)}, v{16+nt} offset:{4096*z}")
            a.I(f"ds_read_b64_tr_b16 {vr(d+2,2)}, v{16+nt} offset:{4096*z+2048}")
        a.I("s_waitcnt lgkmcnt(0)")
        for nt in range(4):
            a.I(f"buffer_store_dwordx4 {vr(20+16*z+4*nt,4)}, v15, {sr(sO,4)}, s55 offen offset:{1024*nt} sc1")
        if z == 0:
            a.I(f"s_add_u32 s55, s55, {1<<19}")
    a.I("s_mov_b32 s27, 1")
    a.I("s_branch A_lmain")

    a.L("A_kv")
    a.I("s_mov_b32 s27, 0")
    kv_setup()
    def tile_off(t):
        a.I(f"s_add_u32 s47, s{sRotT}, {t}")
        a.I("s_and_b32 s47, s47, 15")
        a.I("s_lshl_b32 s47, s47, 14")
    a.I(f"s_cmp_eq_u32 s{sWV}, 7")
    a.I("s_cbranch_scc1 A_v")
    for kind in ("k", "v"):
        if kind == "v":
            a.L("A_v")
        rS, vD, LB, PP, SL = (sK, vKD, KREG, KP, KSL) if kind == "k" else (sV, vVD, VREG, VP, VSL)
        goff = (lambda p: 1024 * p) if kind == "k" else (lambda p: (p & 7) * 256 + (p >> 3) * 8192)
        def piece(t, p):
            if p == 0:
                tile_off(t)
            a.I(f"s_add_u32 s49, s47, {goff(p)}")
            if t in (1, 2):
                a.I(f"buffer_load_dwordx4 {vr(16 + 64*(t-1) + 4*p, 4)}, v{vD}, {sr(rS,4)}, s49 offen{NT}")
            else:
                a.I(f"s_mov_b32 m0, {LB + (t&3)*SL + PP*p}")
                a.I(f"buffer_load_dwordx4 v{vD}, {sr(rS,4)}, s49 offen{NT} lds")
        def dump(t):
            for p in range(16):
                a.I(f"ds_write_b128 v14, {vr(16 + 64*(t-1) + 4*p, 4)} offset:{t*SL + PP*p}")
            a.I("s_waitcnt lgkmcnt(0)")
        a.I(f"v_lshlrev_b32 v14, 4, v{vLANE}")
        a.I(f"v_add_u32 v14, {LB}, v14")
        seq = [(t, p) for t in range(3) for p in range(16)]
        n0, per = opt.get("kv0", 8), opt.get("kvper", 6)
        for t, p in seq[:n0]:
            piece(t, p)
        seq = seq[n0:]
        for c in range(8):
            a.I("s_barrier")
            k = per if c < 7 else len(seq)
            for t, p in seq[:k]:
                piece(t, p)
            seq = seq[k:]
        a.I("s_waitcnt vmcnt(32)")
        a.I("s_barrier")
        for p in range(16):
            piece(3, p)
        a.I("s_waitcnt vmcnt(32)")
        dump(1)
        a.I("s_barrier")
        a.I("s_waitcnt vmcnt(16)")
        dump(2)
        if kind == "k":
            a.I("s_branch A_lmain")

    a.L("A_lmain")
    srd(a, sO, pWs, WSREC)
    p2_setup()
    sLK, sLV, sLW = 20, 21, 23
    a.I(f"s_sub_u32 s{sLW}, s{sWV}, 4")
    a.I(f"s_mul_i32 s{sLK}, s{sLW}, {KP}")
    a.I(f"s_mul_i32 s{sLV}, s{sLW}, {VP}")
    a.I(f"s_lshl_b32 s24, s{sLW}, 10")
    a.I(f"v_add_u32 v{vKD}, s24, v{vKD}")
    a.I(f"s_lshl_b32 s46, s{sLW}, 8")
    a.I(f"v_add_u32 v{vVD}, s46, v{vVD}")
    a.I(f"v_and_b32 v1, 3, v{vLANE}")
    a.I("v_lshlrev_b32 v1, 6, v1")
    def ltile(t):
        tile_off(t)
        for i in range(4):
            a.I(f"s_add_u32 m0, s{sLK}, {KREG + (t&3)*KSL + 4*KP*i}")
            a.I(f"s_add_u32 s49, s47, {4096*i}")
            a.I(f"buffer_load_dwordx4 v{vKD}, {sr(sK,4)}, s49 offen{NT} lds")
        for i in range(4):
            a.I(f"s_add_u32 m0, s{sLV}, {VREG + (t&3)*VSL + 4*VP*i}")
            a.I(f"s_add_u32 s49, s47, {(i&1)*1024 + (i>>1)*8192}")
            a.I(f"buffer_load_dwordx4 v{vVD}, {sr(sV,4)}, s49 offen{NT} lds")
    TCHK = opt.get("tchk", 6)
    sched = {t: [] for t in range(2, 14)}
    ts = list(range(TCHK + 1, 14))
    for j in range(9):
        sched[ts[j * len(ts) // 9]].append(j)
    q = []
    def need_tile(t):
        idx = [i for i, z in enumerate(q) if z == ("t", t)]
        if idx:
            del q[:idx[-1] + 1]
            a.I(f"s_waitcnt vmcnt({len(q)})")
    for t in range(2, 14):
        if t == 3:
            a.I("s_cmp_eq_u32 s27, 0")
            a.I("s_cbranch_scc1 A_noarr")
            a.I("s_waitcnt vmcnt(0)")
            a.I("s_and_b32 s46, s2, 3")
            a.I("s_lshl_b32 s46, s46, 6")
            a.I("v_mov_b32 v2, s46")
            a.I("v_mov_b32 v3, 1")
            a.I("s_mov_b64 exec, 1")
            a.I(f"global_atomic_add v2, v3, s[{pDbg}:{pDbg+1}] sc1")
            a.I("s_mov_b64 exec, -1")
            a.L("A_noarr")
            a.I("s_waitcnt vmcnt(8)")
        need_tile(t)
        if t == TCHK + 1:
            idx = q.index(("c", 0)) if ("c", 0) in q else None
            if idx is not None:
                del q[:idx + 1]
                a.I(f"s_waitcnt vmcnt({len(q)})")
            a.I("s_mov_b32 s3, 0")
            a.L("A_cpoll")
            a.I("v_cmp_gt_u32 vcc, 0x80, v2")
            a.I("s_cbranch_vccz A_cok")
            a.I("s_sleep 4")
            a.I(f"global_load_dword v2, v1, s[{pDbg}:{pDbg+1}] sc1")
            a.I("s_add_u32 s3, s3, 1")
            a.I("s_waitcnt vmcnt(0)")
            a.I("s_cmp_lt_u32 s3, 0x100000")
            a.I("s_cbranch_scc1 A_cpoll")
            a.L("A_cok")
        a.I("s_barrier")
        if t == TCHK:
            a.I(f"global_load_dword v2, v1, s[{pDbg}:{pDbg+1}] sc1")
            q.append(("c", 0))
        ltile(t + 2)
        q.extend([("t", t + 2)] * 8)
        for j in sched[t]:
            slab_load(j, vWR + 16 * j)
            q.extend([("w", j)] * 4)
    def prefill(g):
        for j in range(5):
            slab_off(sROT, 16 * g + 9 + j)
            a.I(f"s_add_u32 m0, s24, {AMAP[g]*AREA + 4096*j}")
            a.I("s_add_u32 s49, s47, s24")
            a.I(f"buffer_load_dwordx4 v{vOA}, {sr(sO,4)}, s49 offen sc1 lds")
            q.append(("p", g))
    need_tile(14)
    a.I("s_barrier")
    prefill(0)
    need_tile(15)
    a.I("s_barrier")
    prefill(1)
    prefill(2)
    a.I("s_barrier")
    prefill(3)
    a.I("s_barrier")
    for j in range(5):
        slab_dma(9 + j, j)
    a.I("s_waitcnt vmcnt(20)")
    a.I("s_barrier")
    a.I("s_branch A_p2")

    for tag, u, last, early in rare:
        a.L(f"A_rare{tag}")
        a.I("s_waitcnt lgkmcnt(0)")
        t0, t1 = vPOOL + 8, vPOOL + 20
        plain_qk(u, t0, t1)
        refresh(u, False, P((u + 1) & 1, 0))
        if not last:
            plain_qk(u + 1, t0, t1)
            for x in early:
                a.I(x)
        a.I(f"s_branch A_back{tag}")
    a.L("A_done")
    a.I("s_endpgm")


HEADER = """; Kernarg layout for this problem (64 bytes, ptrs only, base s[0:1]):
; @launch grid=(256,1,1) block=(512,1,1) lds=163840
.amdgcn_target "amdgcn-amd-amdhsa--gfx950"
.text
"""

def kd(name, nv, ns):
    return f""".p2align 6
.amdhsa_kernel {name}
  .amdhsa_next_free_vgpr {nv}
  .amdhsa_next_free_sgpr {ns}
  .amdhsa_accum_offset {(nv+3)//4*4}
  .amdhsa_group_segment_fixed_size 0
  .amdhsa_kernarg_size 64
  .amdhsa_user_sgpr_count 2
  .amdhsa_user_sgpr_kernarg_segment_ptr 1
  .amdhsa_system_sgpr_workgroup_id_x 1
.end_amdhsa_kernel
"""

def build(opt):
    a = Asm()
    gen(a, opt)
    a.pad_hazards(verbose=bool(opt.get("vpad")))
    out = HEADER + f".globl {KNAME}\n.p2align 8\n.type {KNAME},@function\n" + a.text()
    out += '.section .rodata,"a"\n' + kd(KNAME, 256, 102)
    return out

if __name__ == "__main__":
    opt = {}
    path = sys.argv[1]
    for x in sys.argv[2:]:
        k, _, v = x.partition("=")
        opt[k] = int(v) if v else 1
    open(path, "w").write(build(opt))
```

```python
import struct, sys, math
from asmlib import Asm, vr, sr

def f32(x):
    return "0x%08x" % struct.unpack("<I", struct.pack("<f", x))[0]

CSCALE = (128 ** -0.5) * math.log2(math.e)
HEAD = 16.0
MF = "v_mfma_f32_16x16x32_bf16"
KNAME = "standalone__gqa_block_cached__near_ridge_kernel"
FLAGS = 1 << 24
FLAGS2 = FLAGS + 4096
PART = 20 << 20
WSREC = PART + 2048 * 6144

KP, VP = 1088, 1056
KSL, VSL = 16 * KP, 16 * VP
KREG = 0
XA = 4 * KSL
VREG = XA + 24576
XBUF = {1: XA, 2: 17408, 0: 45056}
WBUF = {1: VREG + 3 * VSL, 2: VREG + 1 * VSL, 0: VREG + 2 * VSL}

pX, pK, pV, pWq, pWo, pOut, pDbg, pWs = 4, 6, 8, 10, 12, 14, 16, 18
sX, sW, sK, sV, sO, sWo = 20, 24, 28, 32, 36, 40
sWV, sB, sH, sRotC, sRotT, sT, sC, sBig = 44, 45, 50, 51, 52, 53, 54, 55
sHL, sHG, sG, sOB, sF2 = 51, 54, 55, 56, 57
WIN = [XA, 0]
STB = 58

def srd(a, d, p, nrec, off=None):
    if off is None:
        a.I(f"s_mov_b32 s{d}, s{p}")
        a.I(f"s_and_b32 s{d+1}, s{p+1}, 0xffff")
    else:
        a.I(f"s_add_u32 s{d}, s{p}, {off}")
        a.I(f"s_addc_u32 s{d+1}, s{p+1}, 0")
        a.I(f"s_and_b32 s{d+1}, s{d+1}, 0xffff")
    a.I(f"s_mov_b32 s{d+2}, {nrec}")
    a.I(f"s_mov_b32 s{d+3}, 0x00020000")

class Stamps:
    def __init__(self, a, n):
        self.a, self.n = a, n
        self.map = None
    def __call__(self, k):
        if not self.n:
            return
        k = self.map.get(k) if self.map else k
        if k is None or isinstance(k, str):
            return
        assert k < self.n
        self.a.I(f"s_memrealtime s[{STB+4*k}:{STB+4*k+1}]")
        self.a.I(f"s_memtime s[{STB+4*k+2}:{STB+4*k+3}]")
        self.a.I("s_waitcnt lgkmcnt(0)")
    def dump(self, v):
        if not self.n:
            return
        a, n = self.a, self.n
        a.I("s_waitcnt vmcnt(0)")
        self(n - 1)
        a.I("s_lshl_b32 s46, s2, 4")
        a.I(f"s_add_u32 s46, s46, s{sWV}")
        a.I(f"s_mul_i32 s46, s46, {16*n}")
        a.I(f"s_add_u32 s46, s46, {1<<27}")
        a.I(f"s_mov_b32 s{sO+2}, 0x4000000")
        a.I(f"v_mov_b32 v{v+2}, 0")
        for k in range(2 * n):
            a.I(f"v_mov_b32 v{v}, s{STB+2*k}")
            a.I(f"v_mov_b32 v{v+1}, s{STB+1+2*k}")
            a.I(f"buffer_store_dwordx2 v[{v}:{v+1}], v{v+2}, {sr(sO,4)}, s46 offen offset:{8*k}")
            a.I("s_nop 1")

def gen(a, opt):
    NT = " nt"
    XP = " nt" if opt.get("xnt") else ""
    WOP = " nt" if opt.get("wont") else ""
    vO, vQ, vS, vP, vNM, vL, vONE, vPOOL = 0, 96, 144, 168, 192, 204, 216, 220
    vKA, vVA, vT = 244, 245, 246
    vLANE, vG, vL15 = 255, 254, 253
    O = lambda dt, q: vO + 12 * dt + 4 * q
    Q = lambda ks, q: vQ + 12 * ks + 4 * q
    S = lambda kt, q: vS + 12 * kt + 4 * q
    P = lambda par, q: vP + 12 * par + 4 * q
    stamp = Stamps(a, opt.get("stamps", 0))
    SM = opt.get("smode", 0)
    if SM == 1:
        stamp.map = {0: 0, 1: 1, 2: 2, "u1": 3, "a1": 4, "a2": 5, "a3": 6, "u28": 7, 3: 8, 6: 9, 10: 10}
    if SM == 2:
        stamp.map = {0: 0, 1: 1, "q1": 2, "q2": 3, "q3": 4, "q4": 5, "q5": 6, "q6": 7, "q7": 8, 2: 9, 10: 10}
    vACC, vOB, vTW = 0, 48, 204
    vOA, vWD, vWA, vFL = 244, 245, 246, 250

    a.L(KNAME)
    a.I("s_cmp_ge_u32 s2, 256")
    a.I("s_cbranch_scc1 A_done")
    stamp(0)
    a.I("s_load_dwordx16 s[4:19], s[0:1], 0")
    a.I("v_lshrrev_b32 v1, 6, v0")
    a.I(f"v_and_b32 v{vLANE}, 63, v0")
    a.I(f"v_readfirstlane_b32 s{sWV}, v1")
    a.I("s_and_b32 s46, s2, 1")
    a.I("s_lshl_b32 s46, s46, 2")
    a.I("s_bfe_u32 s47, s2, 0x20003")
    a.I(f"s_add_u32 s{sB}, s46, s47")
    a.I("s_bfe_u32 s46, s2, 0x20001")
    a.I("s_lshl_b32 s46, s46, 3")
    a.I("s_lshr_b32 s48, s2, 5")
    a.I(f"s_add_u32 s{sH}, s46, s48")
    if opt.get("rotc"):
        a.I("s_lshl_b32 s47, s47, 1")
        a.I(f"s_add_u32 s{sRotC}, s47, s48")
    else:
        a.I(f"s_mov_b32 s{sRotC}, 0")
    if opt.get("rott"):
        a.I(f"s_bfe_u32 s{sRotT}, s2, 0x40003")
    else:
        a.I(f"s_mov_b32 s{sRotT}, 0")
    a.I(f"v_lshrrev_b32 v{vG}, 4, v{vLANE}")
    a.I(f"v_and_b32 v{vL15}, 15, v{vLANE}")
    a.I(f"s_cmp_ge_u32 s{sWV}, 4")
    a.I("s_cbranch_scc1 A_loader")

    def p2_setup(kh):
        a.I(f"s_and_b32 s{sHL}, s{sH}, 7")
        a.I(f"s_lshr_b32 s{sHG}, s{sH}, 3")
        a.I(f"s_and_b32 s{sG}, s{sWV}, 3")
        a.I(f"s_mul_i32 s46, s{sB}, 12")
        a.I(f"s_mul_i32 s47, s{sG}, 3")
        a.I("s_add_u32 s46, s46, s47")
        a.I("s_lshl_b32 s46, s46, 17")
        a.I(f"s_lshl_b32 s47, s{sHG}, 15")
        a.I(f"s_add_u32 s{sOB}, s46, s47")
        a.I(f"s_lshl_b32 s46, s{sB}, 3")
        a.I(f"s_add_u32 s46, s46, s{sHL}")
        a.I("s_lshl_b32 s46, s46, 5")
        a.I(f"s_lshl_b32 s47, s{sG}, 3")
        a.I("s_add_u32 s46, s46, s47")
        a.I(f"s_add_u32 s{sF2}, s46, {4*kh}")
        a.I(f"v_lshlrev_b32 v{vOA}, 4, v{vLANE}")
        t = vTW
        a.I(f"v_lshrrev_b32 v{t}, 2, v{vLANE}")
        a.I(f"v_lshlrev_b32 v{t}, 7, v{t}")
        a.I(f"v_and_b32 v{t+1}, 3, v{vLANE}")
        a.I(f"v_lshl_add_u32 v{t}, v{t+1}, 3, v{t}")
        a.I(f"v_add_u32 v{t}, {WIN[kh]}, v{t}")
        a.I(f"v_bfe_u32 v{t+2}, v{vLANE}, 3, 2")
        for nt in range(4):
            a.I(f"v_xor_b32 v{t+1}, {nt}, v{t+2}")
            a.I(f"v_lshl_add_u32 v{vWA+nt}, v{t+1}, 5, v{t}")
    def slab_read(dst, j):
        r = []
        for nt in range(4):
            r.append(f"ds_read_b64_tr_b16 {vr(dst+4*nt,2)}, v{vWA+nt} offset:{4096*j}")
            r.append(f"ds_read_b64_tr_b16 {vr(dst+4*nt+2,2)}, v{vWA+nt} offset:{4096*j+2048}")
        return r
    def pstep(i, j, ofr, nxt_reads, first):
        w = vTW + 16 * (i & 1)
        a.I("s_waitcnt lgkmcnt(0)")
        n = 0
        for nt in range(4):
            for r3 in range(3):
                acc = vr(vACC + 4 * (3 * nt + r3), 4)
                a.I(f"{MF} {acc}, {vr(w+4*nt,4)}, {vr(ofr(r3),4)}, {'0' if first else acc}")
                if n < len(nxt_reads):
                    a.I(nxt_reads[n])
                n += 1
    def spin(tag, load, cond_fail):
        a.I("s_mov_b32 s3, 0")
        a.L(f"A_poll{tag}")
        a.I(load)
        a.I("s_add_u32 s3, s3, 1")
        a.I("s_waitcnt vmcnt(0)")
        a.I(f"v_cmp_ne_u32 vcc, 1, v{vFL+1}")
        a.I("s_and_b64 vcc, vcc, s[48:49]")
        a.I(f"s_cbranch_vccz A_go{tag}")
        a.I("s_sleep 1")
        a.I("s_cmp_lt_u32 s3, 0x40000")
        a.I(f"s_cbranch_scc1 A_poll{tag}")
        a.L(f"A_go{tag}")
    def phase_p(kh):
        j0 = 4 if kh == 0 else 0
        lo, hi = (1, 4) if kh == 0 else (4, 8)
        a.I(f"v_and_b32 v{vFL}, 7, v{vLANE}")
        a.I(f"v_subrev_u32 v{vFL+1}, s{sHL}, v{vFL}")
        a.I(f"v_subrev_u32 v{vFL+1}, {lo}, v{vFL+1}")
        a.I(f"v_and_b32 v{vFL+1}, 7, v{vFL+1}")
        a.I(f"v_cmp_gt_u32 s[48:49], {hi-lo}, v{vFL+1}")
        a.I(f"v_lshlrev_b32 v{vFL}, 2, v{vFL}")
        a.I(f"s_lshl_b32 s46, s{sB}, 2")
        a.I(f"s_add_u32 s46, s46, s{sG}")
        a.I("s_lshl_b32 s46, s46, 7")
        a.I(f"s_lshl_b32 s47, s{sHG}, 5")
        a.I("s_add_u32 s46, s46, s47")
        a.I(f"s_add_u32 s46, s46, {FLAGS}")
        for x in slab_read(vTW + 16 * (j0 & 1), j0):
            a.I(x)
        spin(f"a{kh}", f"buffer_load_dword v{vFL+1}, v{vFL}, {sr(sO,4)}, s46 offen sc1", None)
        stamp(6)
        D = opt.get("odepth", 3)
        NB = 13
        buf = lambda j: vOB + 12 * (j % NB)
        issued = [j0]
        def oload():
            j = issued[0]
            if j % 4 == 0:
                a.I(f"s_add_u32 s46, s{sHL}, {4*kh + (j>>2)}")
                a.I("s_and_b32 s46, s46, 7")
                a.I("s_lshl_b32 s46, s46, 12")
                a.I(f"s_add_u32 s46, s46, s{sOB}")
                a.I("s_add_u32 s47, s46, 131072")
                a.I("s_add_u32 s3, s46, 262144")
            for r3, so in enumerate((46, 47, 3)):
                a.I(f"buffer_load_dwordx4 {vr(buf(j)+4*r3,4)}, v{vOA}, {sr(sO,4)}, s{so} offen offset:{1024*(j&3)} sc1")
            issued[0] += 1
        for j in range(j0, 16):
            while issued[0] < 16 and issued[0] <= j + D:
                oload()
            a.I(f"s_waitcnt vmcnt({3*(issued[0]-j-1)})")
            nx = slab_read(vTW + 16 * ((j + 1) & 1), j + 1) if j < 15 else []
            pstep(j, j, lambda r3: buf(j) + 4 * r3, nx, kh == 1 and j == 0)
            if j == 9:
                stamp(7)
        stamp(8)
        keep, send = vACC + 24 * kh, vACC + 24 * (1 - kh)
        a.I(f"s_mul_i32 s46, s{sWV}, 6144")
        a.I(f"v_add_u32 v100, s46, v{vOA}")
        a.I(f"s_xor_b32 s46, s{sWV}, 4")
        a.I("s_mul_i32 s46, s46, 6144")
        a.I(f"v_add_u32 v101, s46, v{vOA}")
        a.I("s_barrier")
        for t in range(6):
            a.I(f"ds_write_b128 v100, {vr(send+4*t,4)} offset:{1024*t}")
        a.I("s_waitcnt lgkmcnt(0)")
        a.I("s_barrier")
        for t in range(6):
            a.I(f"ds_read_b128 {vr(48+4*t,4)}, v101 offset:{1024*t}")
        a.I(f"s_add_u32 s46, s{sF2}, s{sHG}")
        a.I("s_mul_i32 s47, s46, 6144")
        a.I(f"s_add_u32 s47, s47, {PART}")
        a.I("s_add_u32 s3, s47, 4096")
        a.I(f"s_cmp_eq_u32 s{sG}, s{sHG}")
        a.I(f"s_cbranch_scc1 A_own{kh}")
        for t in range(6):
            a.I(f"s_waitcnt lgkmcnt({5-t})")
            for e in range(4):
                a.I(f"v_add_f32 v{keep+4*t+e}, v{keep+4*t+e}, v{48+4*t+e}")
            a.I(f"buffer_store_dwordx4 {vr(keep+4*t,4)}, v{vOA}, {sr(sO,4)}, s{47 if t < 4 else 3} offen offset:{1024*(t&3)} sc1")
        a.I("s_lshl_b32 s46, s46, 2")
        a.I(f"s_add_u32 s46, s46, {FLAGS2}")
        a.I("v_mov_b32 v100, 0")
        a.I("v_mov_b32 v101, 1")
        a.I("s_waitcnt vmcnt(0)")
        a.I("s_mov_b64 exec, 1")
        a.I(f"buffer_store_dword v101, v100, {sr(sO,4)}, s46 offen sc1")
        a.I("s_mov_b64 exec, -1")
        stamp(9)
        stamp.dump(108)
        a.I("s_endpgm")
        a.L(f"A_own{kh}")
        a.I(f"v_and_b32 v{vFL}, 3, v{vLANE}")
        a.I(f"v_cmp_ne_u32 s[48:49], s{sHG}, v{vFL}")
        a.I(f"v_lshlrev_b32 v{vFL}, 2, v{vFL}")
        a.I(f"s_lshl_b32 s46, s{sF2}, 2")
        a.I(f"s_add_u32 s46, s46, {FLAGS2}")
        srd(a, sX, pOut, 1572864)
        a.I("s_waitcnt lgkmcnt(0)")
        for k in range(24):
            a.I(f"v_add_f32 v{keep+k}, v{keep+k}, v{48+k}")
        a.I(f"v_and_b32 v100, 1, v{vG}")
        a.I(f"v_lshrrev_b32 v101, 1, v{vG}")
        a.I("v_lshl_or_b32 v100, v100, 1, v101")
        a.I("v_lshlrev_b32 v100, 4, v100")
        a.I(f"v_lshl_add_u32 v100, v{vL15}, 10, v100")
        spin(f"b{kh}", f"buffer_load_dword v{vFL+1}, v{vFL}, {sr(sO,4)}, s46 offen sc1", None)
        stamp(9)
        for k in range(1, 4):
            a.I(f"s_add_u32 s46, s{sHG}, {k}")
            a.I("s_and_b32 s46, s46, 3")
            a.I(f"s_add_u32 s46, s46, s{sF2}")
            a.I("s_mul_i32 s46, s46, 6144")
            a.I(f"s_add_u32 s46, s46, {PART}")
            a.I("s_add_u32 s47, s46, 4096")
            for t in range(6):
                a.I(f"buffer_load_dwordx4 {vr(104+24*(k-1)+4*t,4)}, v{vOA}, {sr(sO,4)}, s{46 if t < 4 else 47} offen offset:{1024*(t&3)} sc1")
        a.I(f"s_lshl_b32 s46, s{sB}, 2")
        a.I(f"s_add_u32 s46, s46, s{sG}")
        a.I(f"s_mul_i32 s46, s46, {48*1024}")
        a.I(f"s_lshl_b32 s47, s{sHL}, 7")
        a.I("s_add_u32 s46, s46, s47")
        a.I(f"s_add_u32 s46, s46, {64*kh}")
        for k in range(3):
            a.I(f"s_waitcnt vmcnt({12-6*k})")
            for e in range(24):
                a.I(f"v_add_f32 v{keep+e}, v{keep+e}, v{104+24*k+e}")
        for r3 in range(3):
            d = 48 + 4 * r3
            for z in range(2):
                o = keep + 12 * z + 4 * r3
                a.I(f"v_cvt_pk_bf16_f32 v{d+2*z}, v{o}, v{o+1}")
                a.I(f"v_cvt_pk_bf16_f32 v{d+2*z+1}, v{o+2}, v{o+3}")
        for r3 in range(3):
            d = 48 + 4 * r3
            a.I(f"v_permlane16_swap_b32 v{d}, v{d+2}")
            a.I(f"v_permlane16_swap_b32 v{d+1}, v{d+3}")
        for r3 in range(3):
            a.I(f"buffer_store_dwordx4 {vr(48+4*r3,4)}, v100, {sr(sX,4)}, s46 offen")
            if r3 < 2:
                a.I("s_add_u32 s46, s46, 16384")
        stamp.dump(108)
        a.I("s_endpgm")

    a.I(f"s_mov_b32 s{sC}, {f32(CSCALE)}")
    a.I(f"s_mov_b32 s{sBig}, 0x40000000")
    if opt.get("prio"):
        a.I(f"s_setprio {opt['prio']}")
    vXA, vWQ = 247, 249
    a.I(f"s_mul_i32 s46, s{sWV}, {48*128}")
    a.I(f"v_lshl_add_u32 v1, v{vL15}, 7, s46")
    a.I(f"v_lshrrev_b32 v2, 1, v{vL15}")
    a.I(f"v_xor_b32 v2, v2, v{vG}")
    a.I(f"v_lshl_add_u32 v{vXA}, v2, 4, v1")
    a.I("v_xor_b32 v2, 4, v2")
    a.I(f"v_lshl_add_u32 v{vXA+1}, v2, 4, v1")
    a.I(f"v_add_u32 v250, {XA}, v{vXA}")
    a.I(f"v_add_u32 v251, {XA}, v{vXA+1}")
    a.I(f"v_bfe_u32 v1, v{vLANE}, 2, 3")
    a.I(f"v_mul_u32_u24 v1, {VP}, v1")
    a.I(f"v_and_b32 v2, 3, v{vLANE}")
    a.I("v_lshl_add_u32 v1, v2, 3, v1")
    a.I(f"v_add_u32 v1, {VREG}, v1")
    a.I(f"v_lshrrev_b32 v2, 5, v{vLANE}")
    a.I(f"v_lshl_add_u32 v{vVA}, v2, 8, v1")
    a.I(f"v_lshl_add_u32 v{vWQ}, v2, 9, v1")
    a.I(f"v_lshrrev_b32 v1, 2, v{vL15}")
    a.I(f"v_mul_u32_u24 v1, {KP}, v1")
    a.I(f"v_and_b32 v3, 3, v{vL15}")
    a.I("v_lshl_add_u32 v1, v3, 8, v1")
    a.I(f"v_and_b32 v4, 1, v{vG}")
    a.I("v_lshl_or_b32 v4, v4, 1, v2")
    a.I("v_xor_b32 v4, v4, v3")
    a.I(f"v_lshl_add_u32 v{vKA}, v4, 4, v1")
    for k in range(4):
        a.I(f"v_mov_b32 v{vONE+k}, 0x3f803f80")
    a.I("s_waitcnt lgkmcnt(0)")
    srd(a, sO, pWs, WSREC)
    SLOT = [0, 1, 2, 3, 4, 0, 1, 2, 3, 4, 0, 1, 2, 3, 4, 5]
    F = lambda f: vPOOL + 4 * SLOT[f]
    def koff(u, kt, ks):
        return ((u >> 1) & 3) * KSL + (2 * (u & 1) + kt) * 4 * KP + 64 * ks
    def voff(u, dt):
        return ((u >> 1) & 3) * VSL + (u & 1) * 8 * VP + 32 * dt
    def kread(dst, u, kt, ks):
        return [f"ds_read_b128 {vr(dst,4)}, v{vKA} offset:{koff(u,kt,ks)}"]
    def vread(dst, u, dt):
        return [f"ds_read_b64_tr_b16 {vr(dst,2)}, v{vVA} offset:{voff(u,dt)}",
                f"ds_read_b64_tr_b16 {vr(dst+2,2)}, v{vVA} offset:{voff(u,dt)+512}"]
    EXP = lambda kt, i: f"v_exp_f32 v{S(kt,0)+i}, v{S(kt,0)+i}"
    CVT = lambda par, kt, j: f"v_cvt_pk_bf16_f32 v{P(par,j>>1)+2*kt+(j&1)}, v{S(kt,0)+2*j}, v{S(kt,0)+2*j+1}"

    def plain_qk(u, t0, t1):
        for kt in range(2):
            for ks in range(4):
                t = t0 if ks % 2 == 0 else t1
                for x in kread(t, u, kt, ks):
                    a.I(x)
                a.I("s_waitcnt lgkmcnt(0)")
                for q in range(3):
                    cin = vr(vNM + 4 * q, 4) if ks == 0 else vr(S(kt, q), 4)
                    a.I(f"{MF} {vr(S(kt,q),4)}, {vr(t,4)}, {vr(Q(ks,q),4)}, {cin}")

    def refresh(u, first, tmp):
        par = u & 1
        for q in range(3):
            m = tmp + 2 * q
            s0, s1 = S(0, q), S(1, q)
            a.I(f"v_max3_f32 v{m}, v{s0}, v{s0+1}, v{s0+2}")
            a.I(f"v_max3_f32 v{m}, v{m}, v{s0+3}, v{s1}")
            a.I(f"v_max3_f32 v{m}, v{m}, v{s1+1}, v{s1+2}")
            a.I(f"v_max_f32 v{m}, v{m}, v{s1+3}")
        for sw in ("v_permlane16_swap_b32", "v_permlane32_swap_b32"):
            for q in range(3):
                a.I(f"v_mov_b32 v{tmp+2*q+1}, v{tmp+2*q}")
            for q in range(3):
                a.I(f"{sw} v{tmp+2*q}, v{tmp+2*q+1}")
            for q in range(3):
                a.I(f"v_max_f32 v{tmp+2*q}, v{tmp+2*q}, v{tmp+2*q+1}")
        for q in range(3):
            m = tmp + 2 * q
            a.I(f"v_add_f32 v{m}, {f32(HEAD)}, v{m}")
            if not first:
                a.I(f"v_max_f32 v{m}, 0, v{m}")
                a.I(f"v_exp_f32 v{m+1}, -v{m}")
        for q in range(3):
            m = tmp + 2 * q
            for e in range(4):
                a.I(f"v_sub_f32 v{vNM+4*q+e}, {'0' if first else 'v%d' % (vNM+4*q+e)}, v{m}")
            for kt in range(2):
                for e in range(4):
                    a.I(f"v_sub_f32 v{S(kt,q)+e}, v{S(kt,q)+e}, v{m}")
        for kt in range(2):
            for i in range(12):
                a.I(EXP(kt, i))
        for kt in range(2):
            for j in range(6):
                a.I(CVT(par, kt, j))
        if not first:
            for q in range(3):
                f = tmp + 2 * q + 1
                for e in range(4):
                    a.I(f"v_mul_f32 v{vL+4*q+e}, v{vL+4*q+e}, v{f}")
                for dt in range(8):
                    for e in range(4):
                        a.I(f"v_mul_f32 v{O(dt,q)+e}, v{O(dt,q)+e}, v{f}")

    XF = lambda c, kk, q: (96 if (c & 1) == 0 else 144) + 12 * kk + 4 * q
    NW = 10
    WPOOL = [168 + 4 * i for i in range(6)] + [120 + 4 * i for i in range(6)]
    WPOOL = [168, 172, 176, 180, 184, 188, 192, 196, 200, 204, 208, 212]
    WF = lambda n: WPOOL[n % 12]
    def xreads(c):
        r = []
        for kk in range(2):
            for q in range(3):
                if c % 3 == 1:
                    r.append((("x", c), f"ds_read_b128 {vr(XF(c,kk,q),4)}, v{250+kk} offset:{2048*q}"))
                else:
                    r.append((("x", c), f"ds_read_b128 {vr(XF(c,kk,q),4)}, v{vXA+kk} offset:{XBUF[c%3] + 2048*q}"))
        return r
    def wreads(c, dt):
        r = []
        for kk in range(2):
            n = 16 * c + 2 * dt + kk
            o = WBUF[c % 3] - VREG + 8 * kk * VP + 32 * dt
            r.append((("w", c, dt), f"ds_read_b64_tr_b16 {vr(WF(n),2)}, v{vWQ} offset:{o}"))
            r.append((("w", c, dt), f"ds_read_b64_tr_b16 {vr(WF(n)+2,2)}, v{vWQ} offset:{o+256}"))
        return r
    def pack(ks):
        r = []
        for q in range(3):
            for z in range(2):
                o = O(2 * ks + z, q)
                for e in range(4):
                    r.append(f"v_mul_f32 v{o+e}, s{sC}, v{o+e}")
            for z in range(2):
                o = O(2 * ks + z, q)
                r.append(f"v_cvt_pk_bf16_f32 v{Q(ks,q)+2*z}, v{o}, v{o+1}")
                r.append(f"v_cvt_pk_bf16_f32 v{Q(ks,q)+2*z+1}, v{o+2}, v{o+3}")
        for q in range(3):
            r.append(f"v_permlane16_swap_b32 v{Q(ks,q)}, v{Q(ks,q)+2}")
            r.append(f"v_permlane16_swap_b32 v{Q(ks,q)+1}, v{Q(ks,q)+3}")
        return r
    lq = []
    def emit(x):
        if isinstance(x, tuple):
            a.I(x[1]); lq.append(x[0])
        else:
            a.I(x)
    def lwait(tags):
        idx = [i for i, t in enumerate(lq) if t in tags]
        if idx:
            del lq[:idx[-1] + 1]
            a.I(f"s_waitcnt lgkmcnt({min(len(lq), 15)})")
    def spread(mf, fill):
        n = len(mf)
        for i, m in enumerate(mf):
            a.I(m)
            for x in fill[len(fill) * i // n: len(fill) * (i + 1) // n]:
                emit(x)
    K0 = [vPOOL + 4 * i for i in range(6)] + [O(0, 0), O(0, 1)]
    a.I("s_barrier")
    stamp(1)
    for x in xreads(0)[:3] + wreads(0, 0)[:2] + xreads(0)[3:] + wreads(0, 0)[2:] + wreads(0, 1):
        emit(x)
    pend = []
    for c in range(8):
        rest = [x for dt in range(2, 8) for x in wreads(c, dt)]
        for dt in range(8):
            fill = []
            if dt < 5:
                fill += rest[24 * dt // 5: 24 * (dt + 1) // 5]
            if dt == 6:
                a.I("s_waitcnt lgkmcnt(0)")
                lq.clear()
                a.I("s_barrier")
                if c < 7:
                    stamp(f"q{c+1}")
                    nx = xreads(c + 1) + wreads(c + 1, 0) + wreads(c + 1, 1)
                else:
                    stamp(2)
                    nx = [(("k", kt, ks), kread(K0[2 * ks + kt], 0, kt, ks)[0]) for ks in range(4) for kt in range(2)]
            if dt >= 6:
                h = (len(nx) + 1) // 2
                fill += nx[:h] if dt == 6 else nx[h:]
            if c == 7:
                if dt >= 2 and dt % 2 == 0:
                    pend = pack(dt // 2 - 1)
                    take = pend[:len(pend) // 2]; pend = pend[len(pend) // 2:]
                else:
                    take = pend; pend = []
                merged = []
                m = max(len(fill), len(take), 1)
                for i in range(m):
                    merged += fill[len(fill) * i // m: len(fill) * (i + 1) // m]
                    merged += take[len(take) * i // m: len(take) * (i + 1) // m]
                fill = merged
            lwait({("x", c), ("w", c, dt)})
            mf = []
            for q in range(3):
                for kk in range(2):
                    cin = "0" if (c == 0 and kk == 0) else vr(O(dt, q), 4)
                    mf.append(f"{MF} {vr(O(dt,q),4)}, {vr(WF(16*c+2*dt+kk),4)}, {vr(XF(c,kk,q),4)}, {cin}")
            spread(mf, fill)
    last_pack = pack(3)
    for ks in range(4):
        lwait({("k", 0, ks), ("k", 1, ks)})
        mf = []
        for kt in range(2):
            for q in range(3):
                cin = "0" if ks == 0 else vr(S(kt, q), 4)
                mf.append(f"{MF} {vr(S(kt,q),4)}, {vr(K0[2*ks+kt],4)}, {vr(Q(ks,q),4)}, {cin}")
        fill = last_pack[14 * ks: 14 * ks + 14] if ks < 3 else [kread(F(f), 1, 0, f)[0] for f in range(4)]
        spread(mf, fill)
    refresh(0, True, P(1, 0))
    a.I(f"s_mov_b32 s{sT}, 0")

    rare = []
    def body(u, tag, last=False, first=False):
        par, np_ = u & 1, (u + 1) & 1
        G = [[] for _ in range(17)]
        if not last:
            for f in range(4):
                G[f] += kread(F(4 + f), u + 1, 1, f)
        for f in range(4):
            G[4 + f] += vread(F(8 + f), u, f)
            G[9 + f] += vread(F(12 + f), u, 4 + f)
        if not last:
            if u == 6:
                G[13] += [f"s_cmp_eq_u32 s{sT}, 3", "s_cbranch_scc1 A_nob16", "s_barrier", "@A_nob16"]
            elif u % 2 == 0:
                G[13].append("s_barrier")
            for f in range(4):
                G[13 + f] += kread(F(f), u + 2, 0, f)
        if not first:
            G[0] += [EXP(1, 6), EXP(1, 7), CVT(par, 1, 0)]
            G[1] += [EXP(1, 8), EXP(1, 9), CVT(par, 1, 1)]
            G[2] += [EXP(1, 10), EXP(1, 11), CVT(par, 1, 2)]
            G[3] += [CVT(par, 1, 3), CVT(par, 1, 4), CVT(par, 1, 5)]
            p0 = P(par, 0)
            G[3] += [f"v_or3_b32 v{vT}, v{p0}, v{p0+1}, v{p0+4}"]
            G[4] += [f"v_or3_b32 v{vT}, v{vT}, v{p0+5}, v{p0+8}", f"v_or3_b32 v{vT}, v{vT}, v{p0+9}, v{p0+2}",
                     f"v_or3_b32 v{vT}, v{vT}, v{p0+3}, v{p0+6}"]
            G[5] += [f"v_or3_b32 v{vT}, v{vT}, v{p0+7}, v{p0+10}"]
            G[6] += [f"v_or_b32 v{vT}, v{vT}, v{p0+11}"]
            G[7] += [f"v_lshl_or_b32 v{vT}, v{vT}, 16, v{vT}", f"v_cmp_le_u32 vcc, s{sBig}, v{vT}"]
        early = []
        if not last:
            early = [EXP(0, 0), EXP(0, 1)]
            G[5] += [early[0]]
            G[6] += [early[1]]
            G[8] += [EXP(0, 2), EXP(0, 3), EXP(0, 4)]
            G[9] += [EXP(0, 5), CVT(np_, 0, 0)]
            G[10] += [EXP(0, 6), CVT(np_, 0, 1)]
            G[11] += [EXP(0, 7), CVT(np_, 0, 2)]
            G[12] += [EXP(0, 8), CVT(np_, 0, 3)]
            G[13] += [EXP(0, 9), EXP(0, 10)]
            G[14] += [EXP(0, 11), EXP(1, 0), CVT(np_, 0, 4)]
            G[15] += [EXP(1, 1), EXP(1, 2), CVT(np_, 0, 5)]
            G[16] += [EXP(1, 3), EXP(1, 4), EXP(1, 5)]
        out = [f for f in range(4)] if not last else [-1] * 4
        frag_of = lambda g: g if g < 8 else (None if g == 8 else g - 1)
        def reads_frag(g):
            if g < 8: return 4 + g
            if g == 8: return None
            if g < 13: return g + 3
            return 16 + (g - 13)
        if last:
            seq = [x for g in range(8) for x in G[g] if x.startswith("ds_")]
            for i, x in enumerate(seq):
                a.I(x)
                out.append(8 + i // 2)
            for g in range(8):
                for x in G[g]:
                    if not x.startswith("ds_"):
                        a.I(x)
            a.I(f"s_cbranch_vccnz A_rare{tag}")
            a.L(f"A_back{tag}")
        for g in range(8 if last else 0, 17):
            fr = frag_of(g)
            if fr is not None and fr in out:
                upto = fr + 1 if (fr % 2 == 0 and (fr + 1) in out) else fr
                idx = max(i for i, z in enumerate(out) if z == upto)
                out = out[idx + 1:]
                a.I(f"s_waitcnt lgkmcnt({len(out)})")
            fill = G[g]
            cost = lambda x: 8 if x.startswith("v_exp") else (0 if x[0] in "s@" else 4)
            tot = sum(cost(x) for x in fill)
            gaps = [[], [], []]
            acc_, gi = 0, 0
            for x in fill:
                while gi < 2 and acc_ + cost(x) / 2 > tot * (gi + 1) / 3:
                    gi += 1
                gaps[gi].append(x)
                acc_ += cost(x)
            for q in range(3):
                if g < 8:
                    kt, ks = g >> 2, g & 3
                    cin = vr(vNM + 4 * q, 4) if ks == 0 else vr(S(kt, q), 4)
                    a.I(f"{MF} {vr(S(kt,q),4)}, {vr(F(g),4)}, {vr(Q(ks,q),4)}, {cin}")
                elif g == 8:
                    a.I(f"{MF} {vr(vL+4*q,4)}, {vr(vONE,4)}, {vr(P(par,q),4)}, {'0' if first else vr(vL+4*q,4)}")
                else:
                    dt = g - 9
                    a.I(f"{MF} {vr(O(dt,q),4)}, {vr(F(8+dt),4)}, {vr(P(par,q),4)}, {'0' if first else vr(O(dt,q),4)}")
                for x in gaps[q]:
                    if x.startswith("@"):
                        a.L(x[1:])
                        continue
                    a.I(x)
                    if x.startswith("ds_"):
                        out.append(reads_frag(g))
            if g == 7 and not first:
                a.I(f"s_cbranch_vccnz A_rare{tag}")
                a.L(f"A_back{tag}")
        if not first:
            rare.append((tag, u, last, early))

    body(0, "F", first=True)
    if SM == 1:
        a.I("s_waitcnt lgkmcnt(0)")
        stamp("u1")
    a.I("s_branch A_loop1")
    a.L("A_loop")
    body(0, "0")
    a.L("A_loop1")
    for u in range(1, 7):
        body(u, str(u))
        if SM == 1 and u == 3:
            a.I("s_waitcnt lgkmcnt(0)")
            stamp("u28")
    a.I(f"s_add_u32 s{sT}, s{sT}, 1")
    a.I(f"s_cmp_eq_u32 s{sT}, 4")
    a.I("s_cbranch_scc1 A_last")
    body(7, "7")
    if SM == 1:
        for k in range(1, 4):
            a.I(f"s_cmp_lg_u32 s{sT}, {k}")
            a.I(f"s_cbranch_scc1 A_st{k}")
            a.I("s_waitcnt lgkmcnt(0)")
            stamp(f"a{k}")
            a.L(f"A_st{k}")
    a.I("s_branch A_loop")
    a.L("A_last")
    body(7, "L", last=True)
    stamp(3)
    a.I(f"v_lshlrev_b32 v247, 4, v{vLANE}")
    a.I(f"s_mul_i32 s46, s{sB}, 12")
    a.I(f"s_mul_i32 s47, s{sWV}, 3")
    a.I("s_add_u32 s46, s46, s47")
    a.I("s_lshl_b32 s46, s46, 5")
    a.I(f"s_add_u32 s46, s46, s{sH}")
    a.I("s_lshl_b32 s46, s46, 12")
    for q in range(3):
        a.I(f"v_rcp_f32 v{vNM+q}, v{vL+4*q}")
    for q in range(3):
        for s in range(4):
            d = vS + 4 * ((4 * q + s) % 12)
            for z in range(2):
                o = O(2 * s + z, q)
                for e in range(4):
                    a.I(f"v_mul_f32 v{o+e}, v{o+e}, v{vNM+q}")
                a.I(f"v_cvt_pk_bf16_f32 v{d+2*z}, v{o}, v{o+1}")
                a.I(f"v_cvt_pk_bf16_f32 v{d+2*z+1}, v{o+2}, v{o+3}")
            a.I(f"buffer_store_dwordx4 {vr(d,4)}, v247, {sr(sO,4)}, s46 offen offset:{1024*s} sc1")
        if q < 2:
            a.I("s_add_u32 s46, s46, 131072")
    a.I("s_barrier")
    stamp(4)
    p2_setup(0)
    for x in slab_read(vTW, 0):
        a.I(x)
    for j in range(4):
        nx = slab_read(vTW + 16 * ((j + 1) & 1), j + 1) if j < 3 else []
        pstep(j, j, lambda r3: vS + 4 * (4 * r3 + j), nx, j == 0)
    a.I(f"s_lshl_b32 s46, s{sB}, 2")
    a.I(f"s_add_u32 s46, s46, s{sWV}")
    a.I("s_lshl_b32 s46, s46, 7")
    a.I(f"s_lshl_b32 s47, s{sH}, 2")
    a.I("s_add_u32 s46, s46, s47")
    a.I(f"s_add_u32 s46, s46, {FLAGS}")
    a.I("v_mov_b32 v100, 0")
    a.I("v_mov_b32 v101, 1")
    a.I("s_waitcnt vmcnt(0)")
    a.I("s_mov_b64 exec, 1")
    a.I(f"buffer_store_dword v101, v100, {sr(sO,4)}, s46 offen sc1")
    a.I("s_mov_b64 exec, -1")
    stamp(5)
    if opt.get("l2o") == 1:
        a.I(f"s_lshl_b32 s46, s{sHL}, 12")
        a.I(f"s_add_u32 s46, s46, s{sOB}")
        for q in range(3):
            for s_ in range(4):
                a.I(f"buffer_store_dwordx4 {vr(vS+4*(4*q+s_),4)}, v{vOA}, {sr(sO,4)}, s46 offen offset:{1024*s_}")
            if q < 2:
                a.I("s_add_u32 s46, s46, 131072")
    elif opt.get("l2o") == 2:
        a.I(f"s_lshl_b32 s46, s{sHL}, 12")
        a.I(f"s_add_u32 s46, s46, s{sOB}")
        a.I(f"v_and_b32 v100, 31, v{vLANE}")
        a.I("v_lshlrev_b32 v100, 7, v100")
        a.I(f"v_lshrrev_b32 v101, 5, v{vLANE}")
        a.I("v_lshl_add_u32 v101, v101, 17, v100")
        a.I(f"buffer_load_dword v102, v101, {sr(sO,4)}, s46 offen sc1")
        a.I("s_add_u32 s46, s46, 262144")
        a.I(f"buffer_load_dword v103, v100, {sr(sO,4)}, s46 offen sc1")
    a.I("s_barrier")
    phase_p(0)

    a.L("A_loader")
    vXD, vWqD, vKD, vVD = 10, 11, 12, 13
    a.I("s_waitcnt lgkmcnt(0)")
    def kv_setup():
        a.I(f"s_lshl_b32 s46, s{sB}, 5")
        a.I(f"s_add_u32 s46, s46, s{sH}")
        a.I("s_lshl_b32 s46, s46, 18")
        srd(a, sK, pK, 262144, "s46")
        srd(a, sV, pV, 262144, "s46")
        a.I(f"v_xor_b32 v1, v{vL15}, v{vG}")
        a.I("v_lshlrev_b32 v1, 4, v1")
        a.I(f"v_lshl_add_u32 v{vKD}, v{vG}, 8, v1")
        a.I(f"v_lshlrev_b32 v1, 4, v{vL15}")
        a.I(f"v_lshl_add_u32 v{vVD}, v{vG}, 11, v1")
    a.I(f"s_cmp_ge_u32 s{sWV}, 6")
    a.I("s_cbranch_scc1 A_kv")
    a.I(f"s_mul_i32 s46, s{sB}, 196608")
    srd(a, sX, pX, 196608, "s46")
    a.I(f"s_lshl_b32 s46, s{sH}, 8")
    a.I("s_sub_u32 s47, 4194304, s46")
    srd(a, sW, pWq, "s47", "s46")
    a.I(f"s_and_b32 s3, s{sWV}, 1")
    a.I("s_lshl_b32 s46, s3, 2")
    a.I(f"v_add_u32 v1, s46, v{vG}")
    a.I(f"v_and_b32 v2, 7, v{vLANE}")
    a.I("v_xor_b32 v1, v1, v2")
    a.I("v_lshlrev_b32 v1, 4, v1")
    a.I(f"v_lshrrev_b32 v2, 3, v{vLANE}")
    a.I("v_lshl_add_u32 v1, v2, 10, v1")
    a.I("s_lshl_b32 s46, s3, 13")
    a.I(f"v_add_u32 v{vXD}, s46, v1")
    a.I(f"v_lshrrev_b32 v1, 1, v{vG}")
    a.I(f"v_and_b32 v2, 1, v{vG}")
    a.I("v_lshlrev_b32 v1, 17, v1")
    a.I("v_lshl_add_u32 v1, v2, 15, v1")
    a.I(f"v_lshl_add_u32 v1, v{vL15}, 4, v1")
    a.I("s_lshl_b32 s46, s3, 18")
    a.I(f"v_add_u32 v{vWqD}, s46, v1")
    a.I("s_lshl_b32 s54, s3, 10")
    a.I(f"s_mul_i32 s55, s3, {8*VP}")
    def issue_chunk(c, hook):
        a.I(f"s_add_u32 s46, s{sRotC}, {c}")
        a.I("s_and_b32 s46, s46, 7")
        a.I("s_lshl_b32 s47, s46, 7")
        a.I("s_lshl_b32 s48, s46, 19")
        order = [("w", 0), ("x", 0), ("x", 1), ("w", 1), ("x", 2), ("w", 2), ("x", 3), ("x", 4), ("w", 3), ("x", 5),
                 ("w", 4), ("x", 6), ("x", 7), ("w", 5), ("x", 8), ("w", 6), ("x", 9), ("x", 10), ("w", 7), ("x", 11)]
        for i, (kind, k) in enumerate(order):
            hook(i)
            if kind == "x":
                a.I(f"s_add_u32 m0, s54, {XBUF[c%3] + 2048*k}")
                a.I(f"s_add_u32 s49, s47, {16384*k}")
                a.I(f"buffer_load_dwordx4 v{vXD}, {sr(sX,4)}, s49 offen{XP} lds")
            else:
                a.I(f"s_add_u32 m0, s55, {WBUF[c%3] + VP*k}")
                a.I(f"s_add_u32 s49, s48, {(8*(k>>2) + (k&3))*8192}")
                a.I(f"buffer_load_dwordx4 v{vWqD}, {sr(sW,4)}, s49 offen{XP} lds")
    W = opt.get("win", 20)
    nb = [0]
    for c in range(8):
        def hook(i, c=c):
            n = 20 * c + i
            while nb[0] < c - 1:
                a.I(f"s_waitcnt vmcnt({max(0, min(63, n - 20*(nb[0]+1)))})")
                a.I("s_barrier")
                nb[0] += 1
            if n >= W:
                a.I(f"s_waitcnt vmcnt({W-1})")
                while 20 * (nb[0] + 1) <= n - (W - 1):
                    a.I("s_barrier")
                    nb[0] += 1
        issue_chunk(c, hook)
    while nb[0] < 8:
        a.I(f"s_waitcnt vmcnt({160 - 20*(nb[0]+1)})")
        a.I("s_barrier")
        nb[0] += 1
    kv_setup()
    srd(a, sO, pWs, WSREC)
    a.I("s_barrier")
    a.I("s_xor_b32 s27, s3, 1")
    a.I("s_cmp_eq_u32 s27, 0")
    a.I("s_cbranch_scc1 A_noclr")
    a.I(f"s_lshl_b32 s46, s{sB}, 9")
    a.I(f"s_lshl_b32 s49, s{sH}, 2")
    a.I("s_add_u32 s46, s46, s49")
    a.I(f"s_add_u32 s46, s46, {FLAGS}")
    a.I(f"s_lshl_b32 s47, s{sB}, 3")
    a.I(f"s_and_b32 s49, s{sH}, 7")
    a.I("s_add_u32 s47, s47, s49")
    a.I("s_lshl_b32 s47, s47, 7")
    a.I(f"s_lshr_b32 s49, s{sH}, 3")
    a.I("s_lshl_b32 s49, s49, 2")
    a.I("s_add_u32 s47, s47, s49")
    a.I(f"s_add_u32 s47, s47, {FLAGS2}")
    a.I(f"v_lshlrev_b32 v1, 7, v{vLANE}")
    a.I(f"v_lshlrev_b32 v3, 4, v{vLANE}")
    a.I("v_mov_b32 v2, 0")
    a.I("s_mov_b64 exec, 15")
    a.I(f"buffer_store_dword v2, v1, {sr(sO,4)}, s46 offen sc1")
    a.I("s_mov_b64 exec, 255")
    a.I(f"buffer_store_dword v2, v3, {sr(sO,4)}, s47 offen sc1")
    a.I("s_mov_b64 exec, -1")
    a.L("A_noclr")
    a.I("s_barrier")
    a.I("s_cmp_eq_u32 s27, 0")
    a.I("s_cbranch_scc1 A_lmain")
    a.I("s_waitcnt vmcnt(0)")
    a.I("s_and_b32 s46, s2, 3")
    a.I("s_lshl_b32 s46, s46, 6")
    a.I("v_mov_b32 v2, s46")
    a.I("v_mov_b32 v3, 1")
    a.I("s_mov_b64 exec, 1")
    a.I(f"global_atomic_add v2, v3, s[{pDbg}:{pDbg+1}] sc1")
    a.I("s_mov_b64 exec, -1")
    a.I("s_branch A_lmain")

    a.L("A_kv")
    kv_setup()
    def tile_off(t):
        a.I(f"s_add_u32 s47, s{sRotT}, {t}")
        a.I("s_and_b32 s47, s47, 15")
        a.I("s_lshl_b32 s47, s47, 14")
    a.I(f"s_cmp_eq_u32 s{sWV}, 7")
    a.I("s_cbranch_scc1 A_v")
    for kind in ("k", "v"):
        if kind == "v":
            a.L("A_v")
        rS, vD, LB, PP, SL = (sK, vKD, KREG, KP, KSL) if kind == "k" else (sV, vVD, VREG, VP, VSL)
        goff = (lambda p: 1024 * p) if kind == "k" else (lambda p: (p & 7) * 256 + (p >> 3) * 8192)
        def piece(t, p):
            if p == 0:
                tile_off(t)
            a.I(f"s_add_u32 s49, s47, {goff(p)}")
            if t in (1, 2):
                a.I(f"buffer_load_dwordx4 {vr(16 + 64*(t-1) + 4*p, 4)}, v{vD}, {sr(rS,4)}, s49 offen{NT}")
            else:
                a.I(f"s_mov_b32 m0, {LB + (t&3)*SL + PP*p}")
                a.I(f"buffer_load_dwordx4 v{vD}, {sr(rS,4)}, s49 offen{NT} lds")
        def dump(t):
            for p in range(16):
                a.I(f"ds_write_b128 v14, {vr(16 + 64*(t-1) + 4*p, 4)} offset:{t*SL + PP*p}")
            a.I("s_waitcnt lgkmcnt(0)")
        a.I(f"v_lshlrev_b32 v14, 4, v{vLANE}")
        a.I(f"v_add_u32 v14, {LB}, v14")
        seq = [(t, p) for t in range(3) for p in range(16)]
        n0, per, kvq = opt.get("kv0", 0), opt.get("kvper", 12), opt.get("kvq", 4)
        for t, p in seq[:n0]:
            piece(t, p)
        seq = seq[n0:]
        for c in range(8):
            a.I("s_barrier")
            k = (per if c >= kvq else 0) if c < 7 else len(seq)
            for t, p in seq[:k]:
                piece(t, p)
            seq = seq[k:]
        a.I("s_waitcnt vmcnt(32)")
        a.I("s_barrier")
        for p in range(16):
            piece(3, p)
        a.I("s_waitcnt vmcnt(32)")
        dump(1)
        a.I("s_barrier")
        a.I("s_waitcnt vmcnt(16)")
        dump(2)
        if kind == "k":
            a.I("s_branch A_lmain")

    a.L("A_lmain")
    srd(a, sO, pWs, WSREC)
    srd(a, sWo, pWo, 4194304)
    p2_setup(1)
    sLK, sLV, sWS = 20, 21, 22
    a.I(f"s_mul_i32 s{sLK}, s{sG}, {KP}")
    a.I(f"s_mul_i32 s{sLV}, s{sG}, {VP}")
    a.I(f"s_lshl_b32 s24, s{sG}, 10")
    a.I(f"v_add_u32 v{vKD}, s24, v{vKD}")
    a.I(f"s_lshl_b32 s46, s{sG}, 8")
    a.I(f"v_add_u32 v{vVD}, s46, v{vVD}")
    a.I(f"v_lshlrev_b32 v1, 1, v{vG}")
    a.I(f"v_and_b32 v2, 7, v{vLANE}")
    a.I("v_xor_b32 v1, v1, v2")
    a.I("v_lshlrev_b32 v1, 4, v1")
    a.I(f"v_lshrrev_b32 v2, 3, v{vLANE}")
    a.I(f"v_lshl_add_u32 v{vWD}, v2, 10, v1")
    a.I(f"s_lshl_b32 s{sWS}, s{sHG}, 20")
    a.I(f"s_lshl_b32 s46, s{sG}, 13")
    a.I(f"s_add_u32 s{sWS}, s{sWS}, s46")
    a.I(f"s_lshl_b32 s46, s{sHL}, 7")
    a.I(f"s_add_u32 s{sWS}, s{sWS}, s46")
    a.I(f"v_add_u32 v14, s24, v{vOA}")
    a.I(f"v_add_u32 v15, {WIN[0]}, v14")
    a.I(f"v_and_b32 v1, 3, v{vLANE}")
    a.I("v_lshlrev_b32 v1, 6, v1")
    q = []
    def ltile(t):
        tile_off(t)
        for i in range(4):
            a.I(f"s_add_u32 m0, s{sLK}, {KREG + (t&3)*KSL + 4*KP*i}")
            a.I(f"s_add_u32 s49, s47, {4096*i}")
            a.I(f"buffer_load_dwordx4 v{vKD}, {sr(sK,4)}, s49 offen{NT} lds")
        for i in range(4):
            a.I(f"s_add_u32 m0, s{sLV}, {VREG + (t&3)*VSL + 4*VP*i}")
            a.I(f"s_add_u32 s49, s47, {(i&1)*1024 + (i>>1)*8192}")
            a.I(f"buffer_load_dwordx4 v{vVD}, {sr(sV,4)}, s49 offen{NT} lds")
        q.extend([("t", t)] * 8)
    held = [(0, 14), (0, 15)] + [(1, j) for j in range(8, 16)]
    late = [x for i in range(8) for x in ((0, 6 + i), (1, i))]
    if opt.get("wearly"):
        held = held + late
    def wpiece(kh, j):
        a.I(f"s_add_u32 s47, s{sHL}, {4*kh + (j>>2)}")
        a.I("s_and_b32 s47, s47, 7")
        a.I("s_lshl_b32 s47, s47, 17")
        a.I(f"s_add_u32 s47, s47, s{sWS}")
        a.I(f"s_add_u32 s47, s47, {(j&3)*32768}")
        if (kh, j) in held:
            a.I(f"buffer_load_dwordx4 {vr(16 + 4*held.index((kh,j)), 4)}, v{vWD}, {sr(sWo,4)}, s47 offen{WOP}")
        else:
            a.I(f"s_add_u32 m0, s24, {WIN[kh] + 4096*j}")
            a.I(f"buffer_load_dwordx4 v{vWD}, {sr(sWo,4)}, s47 offen{WOP} lds")
        q.append(("w", kh, j))
    def need(tag):
        idx = [i for i, z in enumerate(q) if z == tag]
        if idx:
            del q[:idx[-1] + 1]
            a.I(f"s_waitcnt vmcnt({len(q)})")
    early = [(0, j) for j in range(6)] + held
    T0W = opt.get("wstart", 4)
    ts = list(range(T0W, opt.get("wend", 12)))
    sched = {t: [] for t in range(2, 14)}
    for i, e in enumerate(early):
        sched[ts[i * len(ts) // len(early)]].append(e)
    for t in range(2, 14):
        if t == 3:
            a.I("s_waitcnt vmcnt(8)")
        need(("t", t))
        a.I("s_barrier")
        if t == 12:
            a.I(f"global_load_dword v2, v1, s[{pDbg}:{pDbg+1}] sc1")
            q.append(("c",))
        ltile(t + 2)
        for e in sched[t]:
            wpiece(*e)
    need(("t", 14))
    a.I("s_mov_b32 s3, 0")
    a.L("A_cpoll")
    a.I("v_cmp_gt_u32 vcc, 64, v2")
    a.I("s_cbranch_vccz A_cok")
    a.I("s_sleep 4")
    a.I(f"global_load_dword v2, v1, s[{pDbg}:{pDbg+1}] sc1")
    a.I("s_add_u32 s3, s3, 1")
    a.I("s_waitcnt vmcnt(0)")
    a.I("s_cmp_lt_u32 s3, 0x40000")
    a.I("s_cbranch_scc1 A_cpoll")
    a.L("A_cok")
    a.I("s_barrier")
    need(("t", 15))
    a.I("s_barrier")
    WW = opt.get("wwin", 5)
    for i, e in enumerate(late):
        if opt.get("wearly"):
            kh, j = e
            a.I(f"ds_write_b128 v{15 if kh == 0 else 14}, {vr(16+4*held.index(e),4)} offset:{4096*j}")
            continue
        if i >= WW:
            a.I(f"s_waitcnt vmcnt({WW-1})")
        wpiece(*e)
    a.I("s_barrier")
    for i, (kh, j) in enumerate(held[:10]):
        a.I(f"ds_write_b128 v{15 if kh == 0 else 14}, {vr(16+4*i,4)} offset:{4096*j}")
    a.I("s_waitcnt vmcnt(0) lgkmcnt(0)")
    a.I("s_barrier")
    phase_p(1)

    for tag, u, last, early in rare:
        a.L(f"A_rare{tag}")
        a.I("s_waitcnt lgkmcnt(0)")
        t0, t1 = vPOOL + 8, vPOOL + 20
        plain_qk(u, t0, t1)
        refresh(u, False, P((u + 1) & 1, 0))
        if not last:
            plain_qk(u + 1, t0, t1)
            for x in early:
                a.I(x)
        a.I(f"s_branch A_back{tag}")
    a.L("A_done")
    a.I("s_endpgm")


HEADER = """; Kernarg layout for this problem (64 bytes, ptrs only, base s[0:1]):
; @launch grid=(256,1,1) block=(512,1,1) lds=163840
.amdgcn_target "amdgcn-amd-amdhsa--gfx950"
.text
"""

def kd(name, nv, ns):
    return f""".p2align 6
.amdhsa_kernel {name}
  .amdhsa_next_free_vgpr {nv}
  .amdhsa_next_free_sgpr {ns}
  .amdhsa_accum_offset {(nv+3)//4*4}
  .amdhsa_group_segment_fixed_size 0
  .amdhsa_kernarg_size 64
  .amdhsa_user_sgpr_count 2
  .amdhsa_user_sgpr_kernarg_segment_ptr 1
  .amdhsa_system_sgpr_workgroup_id_x 1
.end_amdhsa_kernel
"""

def build(opt):
    a = Asm()
    gen(a, opt)
    a.pad_hazards(verbose=bool(opt.get("vpad")))
    out = HEADER + f".globl {KNAME}\n.p2align 8\n.type {KNAME},@function\n" + a.text()
    out += '.section .rodata,"a"\n' + kd(KNAME, 256, 102)
    return out

if __name__ == "__main__":
    opt = {}
    path = sys.argv[1]
    for x in sys.argv[2:]:
        k, _, v = x.partition("=")
        opt[k] = int(v) if v else 1
    open(path, "w").write(build(opt))
```
